```python
import torch

def _softmax(x, axis=-1):
    return torch.softmax(x, dim=axis)
def _gelu(x):
    return torch.nn.functional.gelu(x, approximate="tanh")
def _silu(x):
    return torch.nn.functional.silu(x)
def _sigmoid(x):
    return torch.sigmoid(x)
def _layernorm(x, axis=-1, eps=1e-5):
    m = x.mean(dim=axis, keepdim=True)
    v = x.var(dim=axis, keepdim=True, unbiased=False)
    return (x - m) / torch.sqrt(v + eps)
def _scatter_add(tgt, idx, src, axis=0):
    return tgt.clone().index_add_(axis, idx, src)
def _segment_sum(src, seg, n):
    out = torch.zeros((n,) + src.shape[1:], dtype=src.dtype)
    return out.index_add_(0, seg, src)
def _pad(x, pw):
    flat = tuple(v for pair in reversed(pw) for v in pair)
    return torch.nn.functional.pad(x, flat)

kernel_name = 'standalone__gqa_softmax__near_ridge'

def setup_inputs():

    _w = (lambda a: (lambda t: t.to(torch.bfloat16) if t.is_floating_point() else t)(torch.as_tensor(a)))
    B, Hq, Hkv, Sq, Sk, D = 16, 32, 32, 384, 384, 128
    return {
        "q": _w((lambda *s: torch.randn(*s, dtype=torch.bfloat16) * 0.8)(B, Hq, Sq, D)),
        "k": _w((lambda *s: torch.randn(*s, dtype=torch.bfloat16) * 0.8)(B, Hkv, Sk, D)),
        "v": _w((lambda *s: torch.randn(*s, dtype=torch.bfloat16) * 0.05)(B, Hkv, Sk, D)),
    }

def reference(q, k, v):
    B, Hq, Sq, D = q.shape
    Hkv = k.shape[1]
    rep = Hq // Hkv
    k = (lambda x, n, axis: torch.repeat_interleave(x, n, dim=axis))(k, rep, axis=1)
    v = (lambda x, n, axis: torch.repeat_interleave(x, n, dim=axis))(v, rep, axis=1)
    scale = D ** -0.5
    scores = torch.einsum("bhqd,bhkd->bhqk", q, k) * scale
    p = _softmax(scores, axis=-1)
    return torch.einsum("bhqk,bhkd->bhqd", p, v)
```

```python
import re

def vr(i, n=1): return [f"v{i+k}" for k in range(n)]
def ar(i, n=1): return [f"a{i+k}" for k in range(n)]
def sr(i, n=1): return [f"s{i+k}" for k in range(n)]
def R(f, i, n=1):
    return f"{f}{i}" if n == 1 else f"{f}[{i}:{i+n-1}]"
def regs(f, i, n=1): return [f"{f}{i+k}" for k in range(n)]

class Op:
    __slots__ = ("text", "kind", "rd", "wr", "srcC", "lo", "hi", "covers", "vmcovers", "lgkm0", "vm0", "tag", "dl", "preds", "pos",
                 "perm", "isload", "stdata", "note", "lgkmN", "vmN", "states", "prio")
    def __init__(self, text, kind, rd=(), wr=(), srcC=(), lo=None, hi=None, perm=False, isload=False, stdata=(), note=""):
        self.text, self.kind = text, kind
        self.rd, self.wr, self.srcC = list(rd), list(wr), list(srcC)
        self.lo, self.hi = lo, hi
        self.covers = None; self.vmcovers = None; self.lgkm0 = False; self.vm0 = False
        self.tag = None; self.dl = None; self.preds = []; self.pos = None
        self.perm = perm; self.isload = isload; self.stdata = list(stdata); self.note = note
        self.lgkmN = None; self.vmN = None; self.states = 1; self.prio = 0
    def w(self, lo=None, hi=None, prio=None):
        if lo is not None: self.lo = lo
        if hi is not None: self.hi = hi
        if prio is not None: self.prio = prio
        return self
    def render(self):
        if self.kind == "wait":
            parts = []
            if self.vmN is not None: parts.append(f"vmcnt({self.vmN})")
            if self.lgkmN is not None: parts.append(f"lgkmcnt({self.lgkmN})")
            assert parts, "unresolved wait"
            return "s_waitcnt " + " ".join(parts)
        return self.text

def mfma16(D, A, B, C):
    ct = "0" if C is None else R(C[0], C[1], 4)
    rd = regs(*A, 4) + regs(*B, 4) + ([] if C is None else regs(*C, 4))
    return Op(f"v_mfma_f32_16x16x32_bf16 {R(D[0], D[1], 4)}, {R(A[0], A[1], 4)}, {R(B[0], B[1], 4)}, {ct}", "mfma", rd, regs(*D, 4),
              srcC=[] if C is None else regs(*C, 4))
def _opr(x):
    return [x] if isinstance(x, str) and re.fullmatch(r"[vas]\d+|vcc|m0", x) else []
def valu(mn, d, *src, kind="valu", extra_rd=(), extra_wr=(), mods=""):
    rd = []
    for s in src: rd += _opr(s.lstrip("-") if isinstance(s, str) else s)
    return Op(f"{mn} {d}, " + ", ".join(str(s) for s in src) + mods, kind, rd + list(extra_rd), _opr(d) + list(extra_wr))
def trans(mn, d, s): return valu(mn, d, s, kind="trans")
def perm(mn, a, b): return Op(f"{mn} {a}, {b}", "valu", [a, b], [a, b], perm=True)
def salu(mn, d, *src, scc_wr=True, scc_rd=False):
    rd = []
    for s in src: rd += _opr(s)
    wr = _opr(d)
    if scc_wr: wr = wr + ["scc"]
    if scc_rd: rd = rd + ["scc"]
    return Op(f"{mn} {d}, " + ", ".join(str(s) for s in src), "salu", rd, wr)
def scmp(mn, a, b): return Op(f"{mn} {a}, {b}", "salu", _opr(a) + _opr(b), ["scc"])
def ds_read(mn, f, d, n, addr, off, extra_rd=()):
    assert 0 <= off < 65536
    return Op(f"{mn} {R(f, d, n)}, {addr} offset:{off}", "lds", [addr] + list(extra_rd), regs(f, d, n), isload=True)
def ds_write(mn, addr, f, s, n, off, extra_rd=(), extra_wr=()):
    assert 0 <= off < 65536
    return Op(f"{mn} {addr}, {R(f, s, n)} offset:{off}", "lds", [addr] + regs(f, s, n) + list(extra_rd), list(extra_wr), stdata=regs(f, s, n))
def dma(voff, srd, soff, off, flags, extra_rd=(), extra_wr=()):
    o = f" offset:{off}" if off else ""
    fl = f" {flags}" if flags else ""
    return Op(f"buffer_load_dwordx4 {voff}, s[{srd}:{srd+3}], {soff} offen{o}{fl} lds", "vmem", [voff, "m0"] + _opr(soff) + list(extra_rd), list(extra_wr))
def bstore(f, s, voff, srd, soff, off, flags, extra_rd=()):
    o = f" offset:{off}" if off else ""
    fl = f" {flags}" if flags else ""
    return Op(f"buffer_store_dwordx4 {R(f, s, 4)}, {voff}, s[{srd}:{srd+3}], {soff} offen{o}{fl}", "vmem",
              [voff] + _opr(soff) + regs(f, s, 4) + list(extra_rd), [], stdata=regs(f, s, 4))
def wait(lds=None, vm=None, lgkm0=False, vm0=False, extra_rd=(), extra_wr=()):
    rg = []
    for o in (lds or []): rg += o.wr if o.isload else []
    op = Op("", "wait", rg + list(extra_rd), rg + list(extra_wr))
    op.covers = lds; op.vmcovers = vm; op.lgkm0 = lgkm0; op.vm0 = vm0
    return op
def barrier(rd=(), wr=()): return Op("s_barrier", "bar", rd, wr)
def branch(text, rd=(), wr=()): return Op(text, "branch", rd, wr)
def label(name): return Op(f"{name}:", "label")
def nop(n):
    o = Op(f"s_nop {n-1}", "nop"); o.states = n; return o
def raw(text, kind="salu", rd=(), wr=()): return Op(text, kind, rd, wr)

ISV = ("valu", "trans")
def is_vgpr(r): return r[0] in "va" and r[1:].isdigit()

def dist(p, c, reg, typ):
    if not is_vgpr(reg):
        if reg == "m0" and typ == "RAW" and p.kind == "salu" and c.kind == "vmem": return 1
        if typ == "RAW" and p.kind in ISV and reg[0] == "s" and c.kind == "vmem": return 5
        if typ == "RAW" and p.kind in ISV and (reg[0] == "s" or reg == "vcc") and c.kind in ISV: return 2
        if typ == "RAW" and p.kind in ISV and reg == "vcc" and c.kind == "branch": return 1
        return 0
    if c.kind in ("wait", "branch", "bar") or p.kind in ("wait", "branch", "bar"): return 0
    if typ == "RAW":
        if p.kind == "mfma":
            if c.kind == "mfma":
                if reg in c.srcC and c.srcC == p.wr and reg not in c.rd[:8]: return 0
                if reg in c.rd[:8]: return 8
                return 6
            return 8
        if p.kind in ISV:
            if c.kind == "mfma": return 2
            if c.perm: return 2
            if "readfirstlane" in c.text or "readlane" in c.text: return 1
            if p.kind == "trans" and c.kind == "valu": return 1
        return 0
    if typ == "WAW":
        if p.kind == "mfma" and c.kind != "mfma": return 8
        return 0
    if typ == "WAR":
        if p.kind == "mfma" and reg in p.srcC and c.kind in ISV: return 3
        if reg in p.stdata: return 2
        return 0

PSEUDO = ("wait", "branch", "bar")
def build_deps(ops):
    lastw, readers, lastp = {}, {}, {}
    for o in ops:
        P = {}
        def add(p, reg, typ):
            if p is o: return
            d = dist(p, o, reg, typ)
            P[id(p)] = (p, max(d, P.get(id(p), (p, 0))[1]))
        for r in o.rd:
            if r in lastw: add(lastw[r], r, "RAW")
            if r in lastp: add(lastp[r], r, "RAW")
        for r in o.wr:
            if r in lastw: add(lastw[r], r, "WAW")
            if r in lastp: add(lastp[r], r, "WAW")
            for q in readers.get(r, []): add(q, r, "WAR")
        if o.kind == "wait":
            for c in (o.covers or []) + (o.vmcovers or []):
                if c.pos == "seg": P[id(c)] = (c, 0)
        o.preds = list(P.values())
        for r in o.rd: readers.setdefault(r, []).append(o)
        for r in o.wr:
            if o.kind in PSEUDO: lastp[r] = o
            else:
                lastw[r] = o; readers[r] = []

def cost(o):
    return {"valu": 4, "trans": 8, "lds": 4, "vmem": 4}.get(o.kind, 0)

def schedule(ops, budget=8.0, tail=(), verbose=False):
    for o in ops: o.pos = "seg"
    build_deps(list(ops) + list(tail))
    mf = [o for o in ops if o.kind == "mfma"]
    N = len(mf)
    mpos = {id(o): i for i, o in enumerate(mf)}
    succ = {id(o): [] for o in list(ops) + list(tail)}
    for o in list(ops) + list(tail):
        for p, d in o.preds: succ[id(p)].append((o, d))
    tailset = set(id(o) for o in tail)
    for o in reversed(ops):
        if o.kind == "mfma": continue
        dl = N - 1 if o.hi is None else min(o.hi, N - 1)
        for s, d in succ[id(o)]:
            if id(s) in tailset: continue
            if s.kind == "mfma": dl = min(dl, mpos[id(s)] - 1 - (1 if d > 0 else 0))
            else:
                lag = 1 if (d > 0 or o.kind == "trans" or s.kind == "trans" or cost(s) == 0 or cost(o) == 0) else 0
                dl = min(dl, s.dl - lag)
        o.dl = dl
    out = []
    at = {}
    clock = [0]
    def emit(o):
        need = 0
        for p, d in o.preds:
            if id(p) not in at:
                assert p.kind != "mfma", f"order violation: {o.render() if o.kind!='wait' else 'wait'} needs future mfma {p.text}"
                force(p)
        for p, d in o.preds:
            need = max(need, d - (clock[0] - at[id(p)] - 1))
        if need > 0:
            n = nop(need); out.append(n); clock[0] += need
        at[id(o)] = clock[0]; clock[0] += 1
        out.append(o)
        if o in pend: pend.remove(o)
    forced = [0]
    def force(o):
        forced[0] += 1
        emit(o)
    def ready(o, g):
        if o.lo is not None and g < o.lo: return False
        for p, d in o.preds:
            if id(p) not in at: return False
            if clock[0] - at[id(p)] - 1 < d: return False
        return True
    pend = [o for o in ops if o.kind != "mfma"]
    order = {id(o): i for i, o in enumerate(ops)}
    key = lambda o: (o.dl - o.prio, order[id(o)])
    carry = 0.0
    est = 0
    for g in range(-1, N):
        if g >= 0: emit(mf[g])
        else:
            for o in sorted([o for o in pend if o.dl < 0], key=key):
                if o in pend: emit(o)
            continue
        credit = budget + carry
        used = 0
        free = True
        while True:
            cand = sorted([o for o in pend if ready(o, g)], key=key)
            if not cand: break
            pick = None
            if free:
                z = [o for o in cand if cost(o) == 0]
                mem = [o for o in cand if o.kind in ("lds", "vmem")]
                v = [o for o in cand if o.kind in ISV]
                best = None
                if mem:
                    m = mem[0]
                    if not (v and v[0].kind == "trans" and key(v[0]) < key(m) and credit < 12):
                        urgent = [o for o in v if key(o) < key(m)]
                        if sum(cost(o) for o in urgent[:4]) <= credit - 4 or m.dl <= g: best = m
                if z and (best is None or key(z[0]) < key(best)) : best = z[0]
                free = False
                if best is not None:
                    emit(best); credit -= cost(best); used += cost(best)
                    continue
            for o in cand:
                c = cost(o) if cost(o) else 4
                if o.dl <= g or (c <= credit and cost(o) > 0):
                    pick = o; break
            if pick is None: break
            c = cost(pick) if cost(pick) else 4
            emit(pick); credit -= c; used += c
        carry = 0.0 if budget <= 8 else max(-8.0, min(credit, 8.0))
        est += max(16, 8 + used)
    for o in sorted(list(pend), key=key):
        if o in pend:
            emit(o); est += cost(o) or 4
    for o in tail:
        emit(o); est += cost(o) or 4
    for o in out: o.pos = None
    if verbose: print(f"  sched: {N} mfma, {len(out)} instrs, est {est} cyc, forced {forced[0]}, nops {sum(o.states for o in out if o.kind=='nop')}")
    return out

def linear(ops):
    return schedule([], tail=ops)

def resolve_waits(trace):
    lds, vm = [], []
    for o in trace:
        if o.kind == "lds": lds.append(o)
        elif o.kind == "vmem": vm.append(o)
        elif o.kind == "wait":
            if o.lgkm0: o.lgkmN = 0
            elif o.covers:
                idx = max(i for i, x in enumerate(lds) if any(x is c for c in o.covers))
                assert all(any(x is c for x in lds) for c in o.covers)
                o.lgkmN = min(15, len(lds) - 1 - idx)
            if o.vm0: o.vmN = 0
            elif o.vmcovers:
                idx = max(i for i, x in enumerate(vm) if any(x is c for c in o.vmcovers))
                assert all(any(x is c for x in vm) for c in o.vmcovers), "vm cover not issued yet"
                o.vmN = min(63, len(vm) - 1 - idx)

def check_trace(trace):
    errs = []
    clock = 0
    lastw, readers = {}, {}
    out_lds, out_vm = [], []
    for o in trace:
        if o.kind == "label": continue
        if o.kind == "wait":
            if o.lgkmN is not None:
                while len(out_lds) > o.lgkmN: out_lds.pop(0)
            if o.vmN is not None:
                while len(out_vm) > o.vmN: out_vm.pop(0)
            clock += 1
            continue
        if o.kind in ("nop",):
            clock += o.states; continue
        if o.kind not in ("branch", "bar"):
            for q in out_lds + out_vm:
                if q.isload:
                    for r in q.wr:
                        if is_vgpr(r) and (r in o.rd or r in o.wr): errs.append(f"uncovered load: [{q.text}] -> [{o.text}] on {r}")
            def chk(p, t, r, typ):
                d = dist(p, o, r, typ)
                if clock - t - 1 < d: errs.append(f"hazard {typ} {r}: [{p.text}] -> [{o.text}] have {clock-t-1} need {d}")
            for r in o.rd:
                if r in lastw: chk(*lastw[r], r, "RAW")
            for r in o.wr:
                if r in lastw: chk(*lastw[r], r, "WAW")
                for p, t in readers.get(r, []): chk(p, t, r, "WAR")
            for r in o.rd: readers.setdefault(r, []).append((o, clock))
            for r in o.wr:
                lastw[r] = (o, clock); readers[r] = []
            for r in list(readers):
                if len(readers[r]) > 6: readers[r] = readers[r][-6:]
        elif o.kind == "branch":
            for r in o.rd:
                if r == "vcc" and r in lastw:
                    p, t = lastw[r]
                    if clock - t - 1 < dist(p, o, r, "RAW"): errs.append("vcc->branch")
        if o.kind == "lds": out_lds.append(o)
        if o.kind == "vmem": out_vm.append(o)
        clock += 1
    return errs
```

```python
import sys, math
sys.path.insert(0, "gen")
from fw import *

class Cfg:
    ldflag = "nt"; stflag = ""; stamps = False; thr_log2 = 10; prefetch_code = True
cfg = Cfg()

NAME = "standalone__gqa_softmax__near_ridge_kernel"
GS = 1056; TILE = 8 * GS; PAIR = 2 * TILE; RING = 3 * PAIR; QBASE = RING; QW = 3 * TILE; OGS = 1040
LDS_BYTES = QBASE + 4 * QW
def O(t, db): return ("v", 32 * t + 4 * db)
def S(t, i=0): return 192 + 8 * (t % 3) + i
def P(t, i=0): return 216 + 4 * (t % 2) + i
LSUB = 224; ET = 228
def NEGM(t): return f"v{232 + t}"
def L(t): return f"v{238 + t}"
vK, vV, vLin, vQ, vOw, vOr = "v244", "v245", "v246", "v247", "v248", "v249"
TMP = 250
def Q(t, s): return ("a", 16 * t + 4 * s)
def K(par, kb, s): return ("a", 96 + 32 * par + 16 * kb + 4 * s)
def V(par, db): return ("a", 160 + 32 * par + 4 * db)
ONES = ("a", 224); STG = 228
SQ, SK, SV, SO = 4, 8, 12, 16
sW, sC, sTHR, sCNT, sKV, sWR, sRD, sWP, sQG, sQL, sDL, sCP, sCM, sNC = "s20 s21 s22 s23 s24 s25 s26 s27 s28 s29 s32 s33 s34 s35".split()
RET = 30
NSUB = 144
C_SCALE = (128 ** -0.5) * math.log2(math.e)
import struct
def f2u(x): return struct.unpack("<I", struct.pack("<f", x))[0]

stub_id = [0]
stubs = []

def QK(u):
    J, t = divmod(u, 6)
    ops = []
    for kb in range(2):
        for s in range(4):
            D = ("v", S(t, 4 * kb))
            ops.append(mfma16(D, K(J % 2, kb, s), Q(t, s), None if s == 0 else D))
    return ops
def SUM(u):
    t = u % 6
    return [mfma16(("v", LSUB), ONES, ("v", P(t)), None)]
def PV(u):
    J, t = divmod(u, 6)
    first = J % 12 == 0
    return [mfma16(O(t, db), V(J % 2, db), ("v", P(t)), None if first else O(t, db)) for db in range(8)]
def rare_regs(t):
    return vr(S(t), 8) + vr(P(t), 4) + vr(LSUB, 4) + vr(32 * t, 32) + [L(t), NEGM(t)]
def CHECK(u, site):
    J, t = divmod(u, 6)
    if J % 12 == 0:
        return [valu("v_mov_b32", L(t), f"v{LSUB}")]
    rr = rare_regs(t)
    lab = f"{site}_{t}"
    b = branch(f"s_cbranch_vccnz Lrare_{lab}\nLret_{lab}:", ["vcc"] + rr, rr)
    if lab not in [x[0] for x in stubs]: stubs.append((lab, t))
    return [valu("v_cmp_lt_f32", "vcc", sTHR, f"v{LSUB}"), b, valu("v_add_f32", L(t), L(t), f"v{LSUB}")]
def colmax(ops, x, a, b):
    ops.append(valu("v_max3_f32", a, x[0], x[1], x[2]))
    ops.append(valu("v_max3_f32", b, x[3], x[4], x[5]))
    ops.append(valu("v_max3_f32", a, a, x[6], x[7]))
    ops.append(valu("v_max_f32", a, a, b))
    ops.append(valu("v_mov_b32", b, a))
    ops.append(perm("v_permlane16_swap_b32", a, b))
    ops.append(valu("v_max_f32", a, a, b))
    ops.append(valu("v_mov_b32", b, a))
    ops.append(perm("v_permlane32_swap_b32", a, b))
    ops.append(valu("v_max_f32", a, a, b))
def SM(u):
    J, t = divmod(u, 6)
    ops = []
    x = [f"v{S(t, i)}" for i in range(8)]
    if J % 12 == 0:
        a, b = f"v{TMP}", f"v{TMP+1}"
        colmax(ops, x, a, b)
        ops.append(valu("v_mul_f32", NEGM(t), sNC, a))
    for i in range(0, 8, 2):
        for k in (i, i + 1): ops.append(valu("v_fma_f32", x[k], x[k], sC, NEGM(t)))
        for k in (i, i + 1): ops.append(trans("v_exp_f32", f"v{ET + k % 4}", x[k]))
        ops.append(valu("v_cvt_pk_bf16_f32", f"v{P(t, i // 2)}", f"v{ET + i % 4}", f"v{ET + (i + 1) % 4}"))
    return ops
def rdK(n):
    return [ds_read("ds_read_b128", *K(n % 2, kb, s), 4, vK, kb * 512 + s * 64, extra_rd=["bar"]) for kb in range(2) for s in range(4)]
def rdV(n):
    return [ds_read("ds_read_b64_tr_b16", "a", V(n % 2, db)[1] + 2 * kb, 2, vV, TILE + kb * 512 + db * 32, extra_rd=["bar"]) for db in range(8) for kb in range(2)]
def rdQ(t):
    return [ds_read("ds_read_b128", *Q(t, s), 4, vQ, (t // 2) * TILE + (t % 2) * 512 + s * 64, extra_rd=["qreg", f"stg{t//2}"]) for s in range(4)]
kv_dma = {}
def dmaKV(n, which="KV"):
    ops = []
    for nm, srd, base in (("K", SK, 0), ("V", SV, TILE)):
        if nm not in which: continue
        for i in range(2):
            if base + 32 * i: ops.append(salu("s_add_u32", "m0", sWR, base + 32 * i))
            else: ops.append(salu("s_mov_b32", "m0", sWR, scc_wr=False))
            d = dma(vLin, srd, sKV, 1024 * i, cfg.ldflag, extra_rd=["bar"])
            kv_dma.setdefault(n, []).append(d); ops.append(d)
    return ops
q_dma = {}
def dmaQ(h, G0, n, extra_rd=()):
    ops = []
    for i in range(n):
        if i: ops.append(salu("s_add_u32", "m0", sQL, 32 * i))
        else: ops.append(salu("s_mov_b32", "m0", sQL, scc_wr=False))
        d = dma(vLin, SQ, sQG, 1024 * i, cfg.ldflag, extra_rd=extra_rd)
        q_dma[(h, G0 + i)] = d; ops.append(d)
    ops.append(salu("s_add_u32", sQG, sQG, 1024 * n))
    ops.append(salu("s_add_u32", sQL, sQL, GS * n))
    return ops
def ring_adv():
    return [salu("s_add_u32", sKV, sKV, 8192),
            salu("s_add_u32", sWR, sRD, sWP),
            salu("s_add_u32", sRD, sRD, sCP),
            scmp("s_cmp_eq_u32", sRD, RING),
            salu("s_cselect_b32", sRD, 0, sRD, scc_wr=False, scc_rd=True),
            salu("s_cselect_b32", sDL, sCM, sCP, scc_wr=False, scc_rd=True),
            valu("v_add_u32", vK, sDL, vK), valu("v_add_u32", vV, sDL, vV)]
def EPI(t, pk=False):
    r = f"v{TMP + 2 + 2 * (t % 2)}"
    ops = [trans("v_rcp_f32", r, L(t))]
    for db in range(8):
        b = O(t, db)[1]
        if pk:
            rn = int(r[1:])
            for i in (0, 2):
                ops.append(Op(f"v_pk_mul_f32 v[{b+i}:{b+i+1}], v[{b+i}:{b+i+1}], v[{rn}:{rn+1}] op_sel_hi:[1,0]", "valu", vr(b + i, 2) + [r], vr(b + i, 2)))
        else:
            for i in range(4): ops.append(valu("v_mul_f32", f"v{b+i}", f"v{b+i}", r))
        ops.append(valu("v_cvt_pk_bf16_f32", f"v{b}", f"v{b}", f"v{b+1}"))
        ops.append(valu("v_cvt_pk_bf16_f32", f"v{b+1}", f"v{b+2}", f"v{b+3}"))
        ops.append(ds_write("ds_write_b64", vOw, "v", b, 2, (t // 2) * 8 * OGS + (t % 2) * 512 + db * 32,
                            extra_wr=[f"stg{k}" for k in range(t // 2 + 1)] if db == 0 else [], extra_rd=[f"stg{t//2}"] if db else []))
        ops[-1].wr.append(f"ost{t}_{db}")
    return ops
stq = [0]
def STORE(n, imm0=None, need=(), lo=None):
    ops = []
    rds = []
    for i in range(n):
        a = STG + 4 * (stq[0] % 4); stq[0] += 1
        off = (i if imm0 is None else imm0 + i) * OGS
        rd = ds_read("ds_read_b128", "a", a, 4, vOr, off, extra_rd=list(need))
        if lo is not None: rd.lo = lo
        rds.append((rd, a)); ops.append(rd)
    return ops, rds
def STORE2(rds, lo=None):
    ops = [wait(lds=[r for r, _ in rds])]
    if lo is not None: ops[0].lo = lo
    for i, (rd, a) in enumerate(rds):
        ops.append(bstore("a", a, vLin, SO, sQG, 1024 * i, cfg.stflag))
    ops.append(salu("s_add_u32", sQG, sQG, 1024 * len(rds)))
    return ops
def ost(blk): return [f"ost{t}_{db}" for t in (2 * blk, 2 * blk + 1) for db in range(8)]

def stamp(i):
    if not cfg.stamps: return []
    return [raw(f"s_memtime s[{40+2*i}:{41+2*i}]", "salu")]

def slots(u0, u1, site, hook=None):
    ops = []
    for u in range(u0, u1):
        if 0 <= u - 1 < NSUB: ops += SUM(u - 1) + CHECK(u - 1, site)
        if u + 1 < NSUB: ops += QK(u + 1)
        if u < NSUB:
            sm = SM(u)
            ops += sm
        if 0 <= u - 1 < NSUB: ops += PV(u - 1)
        if hook: ops += hook(u)
    return ops

def seg_head(J):
    if J == 23: return [], []
    ops = [barrier(rd=["prebar"], wr=["bar"]).w(hi=0)]
    kr, vrd = [], []
    if True:
        d = dmaKV(J + 3)
        for i, o in enumerate(d): o.hi = 4 + 4 * i
        ops += d
    if J + 1 < 24:
        kr = rdK(J + 1); vrd = rdV(J + 1)
        for i, o in enumerate(kr): o.hi = 14 + 5 * i
        for i, o in enumerate(vrd): o.hi = 40 + 3 * i
        ops += kr + vrd
    return ops, kr
def seg_end(J, n):
    w = wait(lgkm0=True, vm=kv_dma[J + 2], extra_rd=[vK, vV], extra_wr=["prebar"])
    w.lo = n - 1
    return [w]

def insert_before_first_reader(ops, w):
    rs = set(w.wr)
    for i, o in enumerate(ops):
        if o.kind == "mfma" and rs & set(o.rd):
            pos = sum(1 for x in ops[:i] if x.kind == "mfma")
            w.lo = pos - 2
            ops.insert(i, w); return
    raise AssertionError

def segment(J):
    u0, u1 = 6 * J + 1, 6 * J + 7
    h, j = divmod(J, 12)
    site = {0: "a", 11: "d", 12: "e", 23: "h"}.get(J) or ("bc"[(J + 1) % 2] if h == 0 else "fg"[(J + 1) % 2])
    head, kr = seg_head(J)
    extra, tail = [], []
    hook = None
    budget = 8.0
    if J == 0:
        q = dmaQ(1, 0, 4, extra_rd=regs("a", 0, 96))
        for o in q: o.lo = 70
        extra += q
        budget = 10.5
    elif 1 <= J <= 10:
        q = dmaQ(1, 4 + 2 * (J - 1), 2)
        for i, o in enumerate(q): o.lo = 40; o.hi = 60 + 4 * i
        extra += q
    elif 13 <= J <= 22:
        a, rds = STORE(2)
        for o in a: o.lo = 30; o.hi = 50
        extra += a + STORE2(rds, lo=60) + [valu("v_add_u32", vOr, 2 * OGS, vOr)]
    body = None
    if J == 11:
        def hook(u):
            o = []
            t = u - 65
            ts = [0, 1, 2] if u == 67 else ([t] if 3 <= t <= 5 else [])
            for t in ts:
                if t % 2 == 0: o.append(wait(vm=[q_dma[(1, g)] for g in range(8 * (t // 2), 8 * (t // 2) + 8)], extra_wr=["qreg"]))
                r = rdQ(t); qr[t] = r; o += r
            t = u - 67
            if 0 <= t <= 2: o += EPI(t)
            return o
        qr = {}
        budget = 14.0
    if J == 12:
        pre = EPI(3) + EPI(4)
        head = head + pre
        def hook(u): return []
        budget = 16.0
    if J == 23:
        def hook(u):
            t = u - 139
            return EPI(t) if 0 <= t <= 3 else []
        budget = 16.0
    body = slots(u0, u1, site, hook)
    if J == 11:
        for t in (0, 1): insert_before_first_reader_after(body, wait(lds=qr[t]), qr[t][-1])
    if J == 12:
        head = head + EPI(5)
        a, rds = STORE(4, need=ost(0), lo=60)
        extra += [salu("s_sub_u32", sQG, sQG, 98304 + 24576)] + a + STORE2(rds, lo=80) + [valu("v_add_u32", vOr, 4 * OGS, vOr)]
    if kr: insert_before_first_reader(body, wait(lds=kr))
    nm = sum(1 for o in body if o.kind == "mfma")
    for o in body:
        if o.kind == "valu" and "cvt_pk" in o.text and o.wr[0] in vr(216, 8): o.hi = nm - 2
    ops = head + body + extra
    if J < 23:
        adv = ring_adv()
        ops += adv + seg_end(J, nm)
    if J in (2, 4, 6, 8, 10, 14, 16, 18, 20, 22):
        ops += [salu("s_sub_u32", sCNT, sCNT, 1), scmp("s_cmp_lg_u32", sCNT, 0)]
        tail = [branch(f"s_cbranch_scc1 Lloop{h}", ["scc"])]
    if J in (0, 12): ops += [salu("s_mov_b32", sCNT, 5, scc_wr=False)]
    if J == 23:
        tail = [salu("s_add_u32", sQG, sQG, 98304 - 24576), valu("v_subrev_u32", vOr, 24 * OGS, vOr)]
        def st(G):
            a, rds = STORE(4, imm0=G); return a, STORE2(rds)
        a0, b0 = st(0)
        e4 = EPI(4, pk=True); e5 = EPI(5, pk=True)
        tail = tail[:2] + a0 + e4[:16] + b0
        a1, b1 = st(4); tail += a1 + e4[16:] + b1
        a2, b2 = st(8); tail += a2 + e5[:16] + b2
        a3, b3 = st(12); tail += a3 + e5[16:] + b3
        a4, b4 = st(16); tail += a4 + b4
        a5, b5 = st(20); tail += a5 + b5
    out = schedule(ops, budget=budget, tail=tail, verbose=True)
    return out

def insert_before_first_reader_after(ops, w, after):
    rs = set(w.wr)
    k = next(i for i, o in enumerate(ops) if o is after)
    for i in range(k + 1, len(ops)):
        o = ops[i]
        if o.kind == "mfma" and rs & set(o.rd):
            pos = sum(1 for x in ops[:i] if x.kind == "mfma")
            w.lo = pos - 2
            ops.insert(i, w); return
    raise AssertionError

def prologue():
    o = []
    A = o.append
    A(raw("s_cmp_ge_u32 s2, 256")); A(raw("s_cbranch_scc1 Lend"))
    o += stamp(0)
    A(raw("s_load_dwordx4 s[36:39], s[0:1], 0")); A(raw("s_load_dwordx4 s[64:67], s[0:1], 16"))
    if cfg.stamps: A(raw("s_load_dwordx2 s[68:69], s[0:1], 40"))
    t = [f"v{TMP+i}" for i in range(6)]
    A(valu("v_lshrrev_b32", t[0], 6, "v0"))
    A(valu("v_and_b32", t[1], 63, "v0"))
    A(valu("v_readfirstlane_b32", sW, t[0]))
    A(valu("v_lshlrev_b32", vLin, 4, t[1]))
    A(valu("v_and_b32", t[2], 15, t[1]))
    A(valu("v_lshrrev_b32", t[3], 4, t[1]))
    if cfg.prefetch_code:
        A(raw("s_getpc_b64 s[70:71]", wr=["s70", "s71"]))
        A(salu("s_and_b32", "s70", "s70", "0xffffff00"))
        A(salu("s_lshl_b32", "s72", sW, 13))
        A(valu("v_add_u32", t[4], "s72", vLin))
        for i in range(8):
            if i == 4: A(valu("v_add_u32", t[4], 4096, t[4]))
            A(Op(f"global_load_dwordx4 a[{STG}:{STG+3}], {t[4]}, s[70:71] offset:{(i%4)*1024}", "vmem", [t[4]], []))
    A(valu("v_and_b32", t[4], 7, t[2])); A(valu("v_lshrrev_b32", t[5], 3, t[2]))
    A(valu("v_mul_u32_u24", vK, GS, t[4])); A(valu("v_lshl_add_u32", vK, t[5], 8, vK)); A(valu("v_lshl_add_u32", vK, t[3], 4, vK))
    A(valu("v_mul_u32_u24", vOw, OGS, t[4])); A(valu("v_lshl_add_u32", vOw, t[5], 8, vOw)); A(valu("v_lshl_add_u32", vOw, t[3], 3, vOw))
    A(valu("v_and_b32", t[4], 1, t[3])); A(valu("v_lshrrev_b32", t[5], 2, t[2])); A(valu("v_lshl_add_u32", t[4], t[4], 2, t[5]))
    A(valu("v_mul_u32_u24", vV, GS, t[4])); A(valu("v_lshrrev_b32", t[5], 1, t[3])); A(valu("v_lshl_add_u32", vV, t[5], 8, vV))
    A(valu("v_and_b32", t[5], 3, t[2])); A(valu("v_lshl_add_u32", vV, t[5], 3, vV))
    A(salu("s_mul_i32", sQL, sW, QW, scc_wr=False)); A(salu("s_add_u32", sQL, sQL, QBASE))
    A(valu("v_add_u32", vQ, sQL, vK)); A(valu("v_add_u32", vOw, sQL, vOw)); A(valu("v_add_u32", vOr, sQL, vLin))
    A(salu("s_mul_i32", sQG, sW, 24576, scc_wr=False))
    A(salu("s_lshl_b32", sKV, sW, 11))
    A(salu("s_mul_i32", sWP, sW, 2 * GS, scc_wr=False))
    A(salu("s_mov_b32", sWR, sWP, scc_wr=False))
    A(salu("s_mov_b32", sC, hex(f2u(C_SCALE)), scc_wr=False)); A(salu("s_mov_b32", sNC, hex(f2u(-C_SCALE)), scc_wr=False))
    A(salu("s_mov_b32", sTHR, hex(f2u(2.0 ** cfg.thr_log2)), scc_wr=False))
    A(salu("s_mov_b32", sCP, PAIR, scc_wr=False)); A(salu("s_mov_b32", sCM, -2 * PAIR, scc_wr=False))
    A(salu("s_mul_i32", "s73", "s2", 196608, scc_wr=False))
    A(valu("v_mov_b32", t[0], "0x3f803f80"))
    for i in range(4): A(valu("v_accvgpr_write_b32", f"a{ONES[1]+i}", t[0]))
    A(raw("s_waitcnt lgkmcnt(0)"))
    for srd, p in ((SK, 38), (SQ, 36), (SV, 64), (SO, 66)):
        A(salu("s_add_u32", f"s{srd}", f"s{p}", "s73")); A(salu("s_addc_u32", f"s{srd+1}", f"s{p+1}", 0, scc_rd=True))
        A(salu("s_mov_b32", f"s{srd+2}", 196608, scc_wr=False)); A(salu("s_mov_b32", f"s{srd+3}", "0x20000", scc_wr=False))
    nxt = [salu("s_add_u32", sKV, sKV, 8192), salu("s_add_u32", sWR, sWR, PAIR)]
    o += dmaKV(0, "K") + dmaQ(0, 0, 4) + dmaQ(0, 4, 4) + dmaKV(0, "V")
    o += [salu("s_add_u32", sKV, sKV, 8192), salu("s_add_u32", sWR, sWR, PAIR)]
    o += dmaQ(0, 8, 4) + dmaQ(0, 12, 4) + dmaKV(1)
    o += [salu("s_add_u32", sKV, sKV, 8192), salu("s_add_u32", sWR, sWR, PAIR)]
    o += dmaQ(0, 16, 4) + dmaQ(0, 20, 4) + dmaKV(2)
    o += [salu("s_add_u32", sKV, sKV, 8192), salu("s_mov_b32", sWR, sWP, scc_wr=False), salu("s_mov_b32", sRD, PAIR, scc_wr=False),
          salu("s_add_u32", sQG, sQG, 98304 - 24576), salu("s_sub_u32", sQL, sQL, QW)]
    o += stamp(1)
    o.append(wait(vm=kv_dma[0])); o.append(barrier())
    o += stamp(2)
    kr = rdK(0); q0 = rdQ(0); q1 = rdQ(1); vv = rdV(0)
    o += kr + q0 + q1 + vv
    o += [valu("v_add_u32", vK, PAIR, vK), valu("v_add_u32", vV, PAIR, vV)]
    o.append(wait(lds=kr + q0))
    lin = linear(o)
    o = QK(0) + [wait(lds=q1)] + QK(1) + SM(0)
    w = wait(vm=[q_dma[(0, g)] for g in range(8, 16)], extra_wr=["qreg"]); o.append(w)
    o += rdQ(2) + rdQ(3)
    w2 = wait(vm=[q_dma[(0, g)] for g in range(16, 24)], extra_wr=["qreg"])
    tail = [w2] + rdQ(4) + rdQ(5) + [wait(lgkm0=True, vm=kv_dma[1])] + stamp(3)
    w.lo = 15
    return lin + schedule(o, budget=12, tail=tail, verbose=True)

def rare(t):
    x = [f"v{S(t, i)}" for i in range(8)]
    a, b, f = f"v{LSUB}", f"v{LSUB+1}", f"v{LSUB+2}"
    o = [label(f"Lrarefn_{t}"), nop(16)]
    colmax(o, x, a, b)
    o.append(valu("v_max_f32", a, 0, a))
    o.append(valu("v_sub_f32", NEGM(t), NEGM(t), a))
    o.append(valu("v_exp_f32", f, f"-{a}", kind="trans"))
    for i in range(8): o.append(valu("v_sub_f32", x[i], x[i], a))
    for i in range(32): o.append(valu("v_mul_f32", f"v{32*t+i}", f"v{32*t+i}", f))
    o.append(valu("v_mul_f32", L(t), L(t), f))
    for i in range(8): o.append(trans("v_exp_f32", x[i], x[i]))
    for i in range(4): o.append(valu("v_cvt_pk_bf16_f32", f"v{P(t, i)}", x[2 * i], x[2 * i + 1]))
    o += SUM(t)
    o.append(nop(12))
    o.append(raw(f"s_setpc_b64 s[{RET}:{RET+1}]", "branch"))
    return linear(o)

def build():
    stubs.clear(); kv_dma.clear(); q_dma.clear(); stq[0] = 0
    pro = prologue()
    segs = []
    for J in range(24):
        if J in (13,): stq[0] = 0
        segs.append(segment(J))
    trace = pro + [o for s in segs for o in s]
    resolve_waits(trace)
    for grp in ([1, 3, 5, 7, 9], [2, 4, 6, 8, 10], [13, 15, 17, 19, 21], [14, 16, 18, 20, 22]):
        n = len(segs[grp[0]])
        assert all(len(segs[J]) == n for J in grp)
        for i in range(n):
            col = [segs[J][i] for J in grp]
            assert len(set((c.kind, c.text) for c in col)) == 1, [c.text for c in col]
            if col[0].kind == "wait":
                for f in ("lgkmN", "vmN"):
                    vals = [getattr(c, f) for c in col]
                    if vals[0] is not None:
                        if len(set(vals)) > 1: print("wait differs", f, vals)
                        for c in col: setattr(c, f, min(vals))
    errs = check_trace(trace)
    for e in errs[:20]: print("ERR", e)
    assert not errs
    L_ = []
    def put(ops):
        for o in ops:
            t = o.render()
            L_.append(t if o.kind == "label" else "    " + t)
    def st(i):
        put(stamp(i))
    put(pro); put(segs[0]); st(4)
    L_.append(".p2align 3\nLloop0:"); put(segs[1]); put(segs[2]); st(5)
    put(segs[11]); put(segs[12]); st(6)
    L_.append(".p2align 3\nLloop1:"); put(segs[13]); put(segs[14]); st(7)
    put(segs[23]); st(8)
    if cfg.stamps:
        L_.append("    s_waitcnt vmcnt(0)"); st(9)
        L_.append("    s_memrealtime s[60:61]\n    s_waitcnt lgkmcnt(0)")
        L_.append("    s_lshl_b32 s74, s2, 2\n    s_add_u32 s74, s74, s20\n    s_lshl_b32 s74, s74, 6\n    v_mov_b32 v16, s74")
        for i in range(10): L_.append(f"    v_mov_b32 v{i}, s{40+2*i}")
        L_.append("    v_mov_b32 v10, s60\n    v_mov_b32 v11, s62\n    s_mov_b64 exec, 1")
        for i in range(3): L_.append(f"    global_store_dwordx4 v16, v[{4*i}:{4*i+3}], s[68:69] offset:{16*i}")
    L_.append("Lend:\n    s_endpgm")
    for lab, t in stubs:
        L_.append(f"Lrare_{lab}:\n    s_call_b64 s[{RET}:{RET+1}], Lrarefn_{t}\n    s_branch Lret_{lab}")
    for t in range(6):
        r = rare(t); assert not check_trace(r); put(r)
    L_.append("    s_endpgm")
    hdr = open("standalone__gqa_softmax__near_ridge.s.ref").read().split("; Override launch")[0]
    src = hdr + f"; @launch grid=(256,1,1) block=(256,1,1) lds={LDS_BYTES}\n"
    src += f""".amdgcn_target "amdgcn-amd-amdhsa--gfx950"
.text
.globl {NAME}
.p2align 8
.type {NAME},@function
{NAME}:
"""
    if cfg.stamps: src += "    s_memrealtime s[62:63]\n"
    src += "\n".join(L_) + "\n"
    src += ".p2align 8\n.fill 8192, 4, 0xbf800000\n" if cfg.prefetch_code else ""
    src += f""".section .rodata,"a"
.p2align 6
.amdhsa_kernel {NAME}
  .amdhsa_next_free_vgpr 512
  .amdhsa_next_free_sgpr 102
  .amdhsa_accum_offset 256
  .amdhsa_group_segment_fixed_size 0
  .amdhsa_kernarg_size 48
  .amdhsa_user_sgpr_count 2
  .amdhsa_user_sgpr_kernarg_segment_ptr 1
  .amdhsa_system_sgpr_workgroup_id_x 1
.end_amdhsa_kernel
"""
    return src

if __name__ == "__main__":
    out = sys.argv[1]
    for a in sys.argv[2:]:
        k, v = a.split("=")
        setattr(cfg, k, eval(v) if k not in ("ldflag", "stflag") else v.replace("+", " "))
    open(out, "w").write(build())
```

```python
import sys, math
sys.path.insert(0, "gen")
from fw import *

class Cfg:
    ldflag = "nt"; stflag = ""; stamps = False; thr_log2 = 10; prefetch_code = True; pad_mfma = 0; pad_nop = 0; fail_us = 0
cfg = Cfg()

NAME = "standalone__gqa_softmax__near_ridge_kernel"
GS = 1056; TILE = 8 * GS; PAIR = 2 * TILE; RING = 3 * PAIR; QBASE = RING; QW = 3 * TILE; OGS = 1040
LDS_BYTES = QBASE + 4 * QW
def O(t, db): return ("v", 32 * t + 4 * db)
def S(t, i=0): return 192 + 8 * (t % 3) + i
def P(t, i=0): return 216 + 4 * (t % 2) + i
LSUB = 224; ET = 228
def NEGM(t): return f"v{232 + t}"
def L(t): return f"v{238 + t}"
vK, vV, vLin, vQ, vOw, vOr = "v244", "v245", "v246", "v247", "v248", "v249"
TMP = 250
def Q(t, s): return ("a", 16 * t + 4 * s)
def K(par, kb, s): return ("a", 96 + 32 * par + 16 * kb + 4 * s)
def V(par, db): return ("a", 160 + 32 * par + 4 * db)
ONES = ("a", 224); STG = 228
SQ, SK, SV, SO = 4, 8, 12, 16
sW, sC, sTHR, sCNT, sKV, sWR, sRD, sWP, sQG, sQL, sDL, sCP, sCM, sNC = "s20 s21 s22 s23 s24 s25 s26 s27 s28 s29 s32 s33 s34 s35".split()
RET = 30
NSUB = 144
C_SCALE = (128 ** -0.5) * math.log2(math.e)
import struct
def f2u(x): return struct.unpack("<I", struct.pack("<f", x))[0]

stub_id = [0]
stubs = []

def QK(u):
    J, t = divmod(u, 6)
    ops = []
    for kb in range(2):
        for s in range(4):
            D = ("v", S(t, 4 * kb))
            ops.append(mfma16(D, K(J % 2, kb, s), Q(t, s), None if s == 0 else D))
    return ops
def SUM(u):
    t = u % 6
    return [mfma16(("v", LSUB), ONES, ("v", P(t)), None)]
def PV(u):
    J, t = divmod(u, 6)
    first = J % 12 == 0
    return [mfma16(O(t, db), V(J % 2, db), ("v", P(t)), None if first else O(t, db)) for db in range(8)]
def rare_regs(t):
    return vr(S(t), 8) + vr(P(t), 4) + vr(LSUB, 4) + vr(32 * t, 32) + [L(t), NEGM(t)]
def CHECK(u, site):
    J, t = divmod(u, 6)
    if J % 12 == 0:
        return [valu("v_mov_b32", L(t), f"v{LSUB}")]
    rr = rare_regs(t)
    lab = f"{site}_{t}"
    b = branch(f"s_cbranch_vccnz Lrare_{lab}\nLret_{lab}:", ["vcc"] + rr, rr)
    if lab not in [x[0] for x in stubs]: stubs.append((lab, t))
    return [valu("v_cmp_lt_f32", "vcc", sTHR, f"v{LSUB}"), b, valu("v_add_f32", L(t), L(t), f"v{LSUB}")]
def colmax(ops, x, a, b):
    ops.append(valu("v_max3_f32", a, x[0], x[1], x[2]))
    ops.append(valu("v_max3_f32", b, x[3], x[4], x[5]))
    ops.append(valu("v_max3_f32", a, a, x[6], x[7]))
    ops.append(valu("v_max_f32", a, a, b))
    ops.append(valu("v_mov_b32", b, a))
    ops.append(perm("v_permlane16_swap_b32", a, b))
    ops.append(valu("v_max_f32", a, a, b))
    ops.append(valu("v_mov_b32", b, a))
    ops.append(perm("v_permlane32_swap_b32", a, b))
    ops.append(valu("v_max_f32", a, a, b))
def SM(u):
    J, t = divmod(u, 6)
    ops = []
    x = [f"v{S(t, i)}" for i in range(8)]
    if J % 12 == 0:
        a, b = f"v{TMP}", f"v{TMP+1}"
        colmax(ops, x, a, b)
        ops.append(valu("v_mul_f32", NEGM(t), sNC, a))
    for i in range(0, 8, 2):
        for k in (i, i + 1): ops.append(valu("v_fma_f32", x[k], x[k], sC, NEGM(t)))
        for k in (i, i + 1): ops.append(trans("v_exp_f32", f"v{ET + k % 4}", x[k]))
        ops.append(valu("v_cvt_pk_bf16_f32", f"v{P(t, i // 2)}", f"v{ET + i % 4}", f"v{ET + (i + 1) % 4}"))
    return ops
def rdK(n):
    return [ds_read("ds_read_b128", *K(n % 2, kb, s), 4, vK, kb * 512 + s * 64, extra_rd=["bar"]) for kb in range(2) for s in range(4)]
def rdV(n):
    return [ds_read("ds_read_b64_tr_b16", "a", V(n % 2, db)[1] + 2 * kb, 2, vV, TILE + kb * 512 + db * 32, extra_rd=["bar"]) for db in range(8) for kb in range(2)]
def rdQ(t):
    return [ds_read("ds_read_b128", *Q(t, s), 4, vQ, (t // 2) * TILE + (t % 2) * 512 + s * 64, extra_rd=["qreg", f"stg{t//2}"]) for s in range(4)]
kv_dma = {}
def dmaKV(n, which="KV"):
    ops = []
    for nm, srd, base in (("K", SK, 0), ("V", SV, TILE)):
        if nm not in which: continue
        for i in range(2):
            if base + 32 * i: ops.append(salu("s_add_u32", "m0", sWR, base + 32 * i))
            else: ops.append(salu("s_mov_b32", "m0", sWR, scc_wr=False))
            d = dma(vLin, srd, sKV, 1024 * i, cfg.ldflag, extra_rd=["bar"])
            kv_dma.setdefault(n, []).append(d); ops.append(d)
    return ops
q_dma = {}
def dmaQ(h, G0, n, extra_rd=()):
    ops = []
    for i in range(n):
        if i: ops.append(salu("s_add_u32", "m0", sQL, 32 * i))
        else: ops.append(salu("s_mov_b32", "m0", sQL, scc_wr=False))
        d = dma(vLin, SQ, sQG, 1024 * i, cfg.ldflag, extra_rd=extra_rd)
        q_dma[(h, G0 + i)] = d; ops.append(d)
    ops.append(salu("s_add_u32", sQG, sQG, 1024 * n))
    ops.append(salu("s_add_u32", sQL, sQL, GS * n))
    return ops
def ring_adv():
    return [salu("s_add_u32", sKV, sKV, 8192),
            salu("s_add_u32", sWR, sRD, sWP),
            salu("s_add_u32", sRD, sRD, sCP),
            scmp("s_cmp_eq_u32", sRD, RING),
            salu("s_cselect_b32", sRD, 0, sRD, scc_wr=False, scc_rd=True),
            salu("s_cselect_b32", sDL, sCM, sCP, scc_wr=False, scc_rd=True),
            valu("v_add_u32", vK, sDL, vK), valu("v_add_u32", vV, sDL, vV)]
def EPI(t, pk=False):
    r = f"v{TMP + 2 + 2 * (t % 2)}"
    ops = [trans("v_rcp_f32", r, L(t))]
    for db in range(8):
        b = O(t, db)[1]
        if pk:
            rn = int(r[1:])
            for i in (0, 2):
                ops.append(Op(f"v_pk_mul_f32 v[{b+i}:{b+i+1}], v[{b+i}:{b+i+1}], v[{rn}:{rn+1}] op_sel_hi:[1,0]", "valu", vr(b + i, 2) + [r], vr(b + i, 2)))
        else:
            for i in range(4): ops.append(valu("v_mul_f32", f"v{b+i}", f"v{b+i}", r))
        ops.append(valu("v_cvt_pk_bf16_f32", f"v{b}", f"v{b}", f"v{b+1}"))
        ops.append(valu("v_cvt_pk_bf16_f32", f"v{b+1}", f"v{b+2}", f"v{b+3}"))
        ops.append(ds_write("ds_write_b64", vOw, "v", b, 2, (t // 2) * 8 * OGS + (t % 2) * 512 + db * 32,
                            extra_wr=[f"stg{k}" for k in range(t // 2 + 1)] if db == 0 else [], extra_rd=[f"stg{t//2}"] if db else []))
        ops[-1].wr.append(f"ost{t}_{db}")
    return ops
stq = [0]
def STORE(n, imm0=None, need=(), lo=None):
    ops = []
    rds = []
    for i in range(n):
        a = STG + 4 * (stq[0] % 4); stq[0] += 1
        off = (i if imm0 is None else imm0 + i) * OGS
        rd = ds_read("ds_read_b128", "a", a, 4, vOr, off, extra_rd=list(need))
        if lo is not None: rd.lo = lo
        rds.append((rd, a)); ops.append(rd)
    return ops, rds
def STORE2(rds, lo=None):
    ops = [wait(lds=[r for r, _ in rds])]
    if lo is not None: ops[0].lo = lo
    for i, (rd, a) in enumerate(rds):
        ops.append(bstore("a", a, vLin, SO, sQG, 1024 * i, cfg.stflag))
    ops.append(salu("s_add_u32", sQG, sQG, 1024 * len(rds)))
    return ops
def ost(blk): return [f"ost{t}_{db}" for t in (2 * blk, 2 * blk + 1) for db in range(8)]

def stamp(i):
    if not cfg.stamps: return []
    return [raw(f"s_memtime s[{40+2*i}:{41+2*i}]", "salu")]

def slots(u0, u1, site, hook=None):
    ops = []
    for u in range(u0, u1):
        if 0 <= u - 1 < NSUB: ops += SUM(u - 1) + CHECK(u - 1, site)
        if u + 1 < NSUB: ops += QK(u + 1)
        if u < NSUB:
            sm = SM(u)
            ops += sm
        if 0 <= u - 1 < NSUB: ops += PV(u - 1)
        if hook: ops += hook(u)
    return ops

def seg_head(J):
    if J == 23: return [], []
    ops = [barrier(rd=["prebar"], wr=["bar"]).w(hi=0)]
    kr, vrd = [], []
    if True:
        d = dmaKV(J + 3)
        for i, o in enumerate(d): o.hi = 4 + 4 * i
        ops += d
    if J + 1 < 24:
        kr = rdK(J + 1); vrd = rdV(J + 1)
        for i, o in enumerate(kr): o.hi = 14 + 5 * i
        for i, o in enumerate(vrd): o.hi = 40 + 3 * i
        ops += kr + vrd
    return ops, kr
def seg_end(J, n):
    w = wait(lgkm0=True, vm=kv_dma[J + 2], extra_rd=[vK, vV], extra_wr=["prebar"])
    w.lo = n - 1
    return [w]

def insert_before_first_reader(ops, w):
    rs = set(w.wr)
    for i, o in enumerate(ops):
        if o.kind == "mfma" and rs & set(o.rd):
            pos = sum(1 for x in ops[:i] if x.kind == "mfma")
            w.lo = pos - 2
            ops.insert(i, w); return
    raise AssertionError

def segment(J):
    u0, u1 = 6 * J + 1, 6 * J + 7
    h, j = divmod(J, 12)
    site = {0: "a", 11: "d", 12: "e", 23: "h"}.get(J) or ("bc"[(J + 1) % 2] if h == 0 else "fg"[(J + 1) % 2])
    head, kr = seg_head(J)
    extra, tail = [], []
    hook = None
    budget = 8.0
    if J == 0:
        q = dmaQ(1, 0, 4, extra_rd=regs("a", 0, 96))
        for o in q: o.lo = 70
        extra += q
        budget = 10.5
    elif 1 <= J <= 10:
        q = dmaQ(1, 4 + 2 * (J - 1), 2)
        for i, o in enumerate(q): o.lo = 40; o.hi = 60 + 4 * i
        extra += q
    elif 13 <= J <= 22:
        a, rds = STORE(2)
        for o in a: o.lo = 30; o.hi = 50
        extra += a + STORE2(rds, lo=60) + [valu("v_add_u32", vOr, 2 * OGS, vOr)]
    body = None
    if J == 11:
        def hook(u):
            o = []
            t = u - 65
            ts = [0, 1, 2] if u == 67 else ([t] if 3 <= t <= 5 else [])
            for t in ts:
                if t % 2 == 0: o.append(wait(vm=[q_dma[(1, g)] for g in range(8 * (t // 2), 8 * (t // 2) + 8)], extra_wr=["qreg"]))
                r = rdQ(t); qr[t] = r; o += r
            t = u - 67
            if 0 <= t <= 2: o += EPI(t)
            return o
        qr = {}
        budget = 14.0
    if J == 12:
        pre = EPI(3) + EPI(4)
        head = head + pre
        def hook(u): return []
        budget = 16.0
    if J == 23:
        def hook(u):
            t = u - 139
            return EPI(t) if 0 <= t <= 3 else []
        budget = 16.0
    body = slots(u0, u1, site, hook)
    if J == 11:
        for t in (0, 1): insert_before_first_reader_after(body, wait(lds=qr[t]), qr[t][-1])
    if J == 12:
        head = head + EPI(5)
        a, rds = STORE(4, need=ost(0), lo=60)
        extra += [salu("s_sub_u32", sQG, sQG, 98304 + 24576)] + a + STORE2(rds, lo=80) + [valu("v_add_u32", vOr, 4 * OGS, vOr)]
    if kr: insert_before_first_reader(body, wait(lds=kr))
    nm = sum(1 for o in body if o.kind == "mfma")
    for o in body:
        if o.kind == "valu" and "cvt_pk" in o.text and o.wr[0] in vr(216, 8): o.hi = nm - 2
    ops = head + body + extra
    if J < 23:
        adv = ring_adv()
        ops += adv + seg_end(J, nm)
    if J in (2, 4, 6, 8, 10, 14, 16, 18, 20, 22):
        ops += [salu("s_sub_u32", sCNT, sCNT, 1), scmp("s_cmp_lg_u32", sCNT, 0)]
        tail = [branch(f"s_cbranch_scc1 Lloop{h}", ["scc"])]
    if J in (0, 12): ops += [salu("s_mov_b32", sCNT, 5, scc_wr=False)]
    if J == 23:
        tail = [salu("s_add_u32", sQG, sQG, 98304 - 24576), valu("v_subrev_u32", vOr, 24 * OGS, vOr)]
        def st(G):
            a, rds = STORE(4, imm0=G); return a, STORE2(rds)
        a0, b0 = st(0)
        e4 = EPI(4, pk=True); e5 = EPI(5, pk=True)
        tail = tail[:2] + a0 + e4[:16] + b0
        a1, b1 = st(4); tail += a1 + e4[16:] + b1
        a2, b2 = st(8); tail += a2 + e5[:16] + b2
        a3, b3 = st(12); tail += a3 + e5[16:] + b3
        a4, b4 = st(16); tail += a4 + b4
        a5, b5 = st(20); tail += a5 + b5
    out = schedule(ops, budget=budget, tail=tail, verbose=True)
    return out

def insert_before_first_reader_after(ops, w, after):
    rs = set(w.wr)
    k = next(i for i, o in enumerate(ops) if o is after)
    for i in range(k + 1, len(ops)):
        o = ops[i]
        if o.kind == "mfma" and rs & set(o.rd):
            pos = sum(1 for x in ops[:i] if x.kind == "mfma")
            w.lo = pos - 2
            ops.insert(i, w); return
    raise AssertionError

def prologue():
    o = []
    A = o.append
    A(raw("s_cmp_ge_u32 s2, 256")); A(raw("s_cbranch_scc1 Lend"))
    o += stamp(0)
    A(raw("s_load_dwordx4 s[36:39], s[0:1], 0")); A(raw("s_load_dwordx4 s[64:67], s[0:1], 16"))
    if cfg.stamps: A(raw("s_load_dwordx2 s[68:69], s[0:1], 40"))
    t = [f"v{TMP+i}" for i in range(6)]
    A(valu("v_lshrrev_b32", t[0], 6, "v0"))
    A(valu("v_and_b32", t[1], 63, "v0"))
    A(valu("v_readfirstlane_b32", sW, t[0]))
    A(valu("v_lshlrev_b32", vLin, 4, t[1]))
    A(valu("v_and_b32", t[2], 15, t[1]))
    A(valu("v_lshrrev_b32", t[3], 4, t[1]))
    if cfg.prefetch_code:
        A(raw("s_getpc_b64 s[70:71]", wr=["s70", "s71"]))
        A(salu("s_and_b32", "s70", "s70", "0xffffff00"))
        A(salu("s_lshl_b32", "s72", sW, 13))
        A(valu("v_add_u32", t[4], "s72", vLin))
        for i in range(8):
            if i == 4: A(valu("v_add_u32", t[4], 4096, t[4]))
            A(Op(f"global_load_dwordx4 a[{STG}:{STG+3}], {t[4]}, s[70:71] offset:{(i%4)*1024}", "vmem", [t[4]], []))
    A(valu("v_and_b32", t[4], 7, t[2])); A(valu("v_lshrrev_b32", t[5], 3, t[2]))
    A(valu("v_mul_u32_u24", vK, GS, t[4])); A(valu("v_lshl_add_u32", vK, t[5], 8, vK)); A(valu("v_lshl_add_u32", vK, t[3], 4, vK))
    A(valu("v_mul_u32_u24", vOw, OGS, t[4])); A(valu("v_lshl_add_u32", vOw, t[5], 8, vOw)); A(valu("v_lshl_add_u32", vOw, t[3], 3, vOw))
    A(valu("v_and_b32", t[4], 1, t[3])); A(valu("v_lshrrev_b32", t[5], 2, t[2])); A(valu("v_lshl_add_u32", t[4], t[4], 2, t[5]))
    A(valu("v_mul_u32_u24", vV, GS, t[4])); A(valu("v_lshrrev_b32", t[5], 1, t[3])); A(valu("v_lshl_add_u32", vV, t[5], 8, vV))
    A(valu("v_and_b32", t[5], 3, t[2])); A(valu("v_lshl_add_u32", vV, t[5], 3, vV))
    A(salu("s_mul_i32", sQL, sW, QW, scc_wr=False)); A(salu("s_add_u32", sQL, sQL, QBASE))
    A(valu("v_add_u32", vQ, sQL, vK)); A(valu("v_add_u32", vOw, sQL, vOw)); A(valu("v_add_u32", vOr, sQL, vLin))
    A(salu("s_mul_i32", sQG, sW, 24576, scc_wr=False))
    A(salu("s_lshl_b32", sKV, sW, 11))
    A(salu("s_mul_i32", sWP, sW, 2 * GS, scc_wr=False))
    A(salu("s_mov_b32", sWR, sWP, scc_wr=False))
    A(salu("s_mov_b32", sC, hex(f2u(C_SCALE)), scc_wr=False)); A(salu("s_mov_b32", sNC, hex(f2u(-C_SCALE)), scc_wr=False))
    A(salu("s_mov_b32", sTHR, hex(f2u(2.0 ** cfg.thr_log2)), scc_wr=False))
    A(salu("s_mov_b32", sCP, PAIR, scc_wr=False)); A(salu("s_mov_b32", sCM, -2 * PAIR, scc_wr=False))
    A(salu("s_mul_i32", "s73", "s2", 196608, scc_wr=False))
    A(valu("v_mov_b32", t[0], "0x3f803f80"))
    for i in range(4): A(valu("v_accvgpr_write_b32", f"a{ONES[1]+i}", t[0]))
    A(raw("s_waitcnt lgkmcnt(0)"))
    for srd, p in ((SK, 38), (SQ, 36), (SV, 64), (SO, 66)):
        A(salu("s_add_u32", f"s{srd}", f"s{p}", "s73")); A(salu("s_addc_u32", f"s{srd+1}", f"s{p+1}", 0, scc_rd=True))
        A(salu("s_mov_b32", f"s{srd+2}", 196608, scc_wr=False)); A(salu("s_mov_b32", f"s{srd+3}", "0x20000", scc_wr=False))
    nxt = [salu("s_add_u32", sKV, sKV, 8192), salu("s_add_u32", sWR, sWR, PAIR)]
    o += dmaKV(0, "K") + dmaQ(0, 0, 4) + dmaQ(0, 4, 4) + dmaKV(0, "V")
    o += [salu("s_add_u32", sKV, sKV, 8192), salu("s_add_u32", sWR, sWR, PAIR)]
    o += dmaQ(0, 8, 4) + dmaQ(0, 12, 4) + dmaKV(1)
    o += [salu("s_add_u32", sKV, sKV, 8192), salu("s_add_u32", sWR, sWR, PAIR)]
    o += dmaQ(0, 16, 4) + dmaQ(0, 20, 4) + dmaKV(2)
    o += [salu("s_add_u32", sKV, sKV, 8192), salu("s_mov_b32", sWR, sWP, scc_wr=False), salu("s_mov_b32", sRD, PAIR, scc_wr=False),
          salu("s_add_u32", sQG, sQG, 98304 - 24576), salu("s_sub_u32", sQL, sQL, QW)]
    o += stamp(1)
    o.append(wait(vm=kv_dma[0])); o.append(barrier())
    o += stamp(2)
    kr = rdK(0); q0 = rdQ(0); q1 = rdQ(1); vv = rdV(0)
    o += kr + q0 + q1 + vv
    o += [valu("v_add_u32", vK, PAIR, vK), valu("v_add_u32", vV, PAIR, vV)]
    o.append(wait(lds=kr + q0))
    lin = linear(o)
    o = QK(0) + [wait(lds=q1)] + QK(1) + SM(0)
    w = wait(vm=[q_dma[(0, g)] for g in range(8, 16)], extra_wr=["qreg"]); o.append(w)
    o += rdQ(2) + rdQ(3)
    w2 = wait(vm=[q_dma[(0, g)] for g in range(16, 24)], extra_wr=["qreg"])
    tail = [w2] + rdQ(4) + rdQ(5) + [wait(lgkm0=True, vm=kv_dma[1])] + stamp(3)
    w.lo = 15
    return lin + schedule(o, budget=12, tail=tail, verbose=True)

def rare(t):
    x = [f"v{S(t, i)}" for i in range(8)]
    a, b, f = f"v{LSUB}", f"v{LSUB+1}", f"v{LSUB+2}"
    o = [label(f"Lrarefn_{t}"), nop(16)]
    colmax(o, x, a, b)
    o.append(valu("v_max_f32", a, 0, a))
    o.append(valu("v_sub_f32", NEGM(t), NEGM(t), a))
    o.append(valu("v_exp_f32", f, f"-{a}", kind="trans"))
    for i in range(8): o.append(valu("v_sub_f32", x[i], x[i], a))
    for i in range(32): o.append(valu("v_mul_f32", f"v{32*t+i}", f"v{32*t+i}", f))
    o.append(valu("v_mul_f32", L(t), L(t), f))
    for i in range(8): o.append(trans("v_exp_f32", x[i], x[i]))
    for i in range(4): o.append(valu("v_cvt_pk_bf16_f32", f"v{P(t, i)}", x[2 * i], x[2 * i + 1]))
    o += SUM(t)
    o.append(nop(12))
    o.append(raw(f"s_setpc_b64 s[{RET}:{RET+1}]", "branch"))
    return linear(o)

def build():
    stubs.clear(); kv_dma.clear(); q_dma.clear(); stq[0] = 0
    pro = prologue()
    segs = []
    for J in range(24):
        if J in (13,): stq[0] = 0
        segs.append(segment(J))
    trace = pro + [o for s in segs for o in s]
    resolve_waits(trace)
    for grp in ([1, 3, 5, 7, 9], [2, 4, 6, 8, 10], [13, 15, 17, 19, 21], [14, 16, 18, 20, 22]):
        n = len(segs[grp[0]])
        assert all(len(segs[J]) == n for J in grp)
        for i in range(n):
            col = [segs[J][i] for J in grp]
            assert len(set((c.kind, c.text) for c in col)) == 1, [c.text for c in col]
            if col[0].kind == "wait":
                for f in ("lgkmN", "vmN"):
                    vals = [getattr(c, f) for c in col]
                    if vals[0] is not None:
                        if len(set(vals)) > 1: print("wait differs", f, vals)
                        for c in col: setattr(c, f, min(vals))
    errs = check_trace(trace)
    for e in errs[:20]: print("ERR", e)
    assert not errs
    L_ = []
    def put(ops):
        for o in ops:
            t = o.render()
            L_.append(t if o.kind == "label" else "    " + t)
    def st(i):
        put(stamp(i))
    put(pro); put(segs[0]); st(4)
    L_.append(".p2align 3\nLloop0:"); put(segs[1]); put(segs[2]); st(5)
    put(segs[11]); put(segs[12]); st(6)
    L_.append(".p2align 3\nLloop1:"); put(segs[13]); put(segs[14]); st(7)
    put(segs[23]); st(8)
    if cfg.pad_mfma:
        L_.append(f"    s_mov_b32 s23, {cfg.pad_mfma // 32}\nLpad:")
        for i in range(32):
            L_.append(f"    v_mfma_f32_16x16x32_bf16 v[{192+4*(i//4%4)}:{195+4*(i//4%4)}], a[{96+4*(i%16)}:{99+4*(i%16)}], a[{4*(i%24)}:{3+4*(i%24)}], v[{192+4*(i//4%4)}:{195+4*(i//4%4)}]")
        L_.append("    s_sub_u32 s23, s23, 1\n    s_cmp_lg_u32 s23, 0\n    s_cbranch_scc1 Lpad")
    if cfg.pad_nop:
        L_.append(f"    s_mov_b32 s23, {cfg.pad_nop}\nLpad:")
        for i in range(8): L_.append("    s_nop 15")
        L_.append("    s_sub_u32 s23, s23, 1\n    s_cmp_lg_u32 s23, 0\n    s_cbranch_scc1 Lpad")
    if cfg.stamps:
        L_.append("    s_waitcnt vmcnt(0)"); st(9)
        L_.append("    s_memrealtime s[60:61]\n    s_waitcnt lgkmcnt(0)")
        L_.append("    s_lshl_b32 s74, s2, 2\n    s_add_u32 s74, s74, s20\n    s_lshl_b32 s74, s74, 6\n    v_mov_b32 v16, s74")
        for i in range(10): L_.append(f"    v_mov_b32 v{i}, s{40+2*i}")
        L_.append("    v_mov_b32 v10, s60\n    v_mov_b32 v11, s62\n    s_mov_b64 exec, 1")
        for i in range(3): L_.append(f"    global_store_dwordx4 v16, v[{4*i}:{4*i+3}], s[68:69] offset:{16*i}")
    if cfg.fail_us:
        L_.append(f'''    s_waitcnt vmcnt(0)
    s_load_dwordx2 s[68:69], s[0:1], 32
    s_not_b32 s61, s62
    v_mov_b32 v0, s61
    v_mov_b32 v1, 0
    v_mov_b32 v2, 1
    s_mov_b64 exec, 1
    s_waitcnt lgkmcnt(0)
    global_atomic_umax v1, v0, s[68:69] offset:4
    s_waitcnt vmcnt(0)
    global_atomic_add v3, v1, v2, s[68:69] offset:8 sc0
    s_waitcnt vmcnt(0)
    v_readfirstlane_b32 s60, v3
    s_cmp_lg_u32 s60, 1023
    s_cbranch_scc1 Lend
    global_atomic_umax v3, v1, v1, s[68:69] offset:4 sc0
    s_memrealtime s[60:61]
    s_waitcnt vmcnt(0) lgkmcnt(0)
    v_not_b32 v3, v3
    v_sub_u32 v0, s60, v3
    global_store_dword v1, v0, s[68:69]
    s_nop 0
    v_readfirstlane_b32 s60, v0
    s_cmp_lt_u32 s60, {int(cfg.fail_us[0] * 100)}
    s_cbranch_scc1 Lend
    s_cmp_ge_u32 s60, {int(cfg.fail_us[1] * 100)}
    s_cbranch_scc1 Lend
    v_cvt_f32_u32 v0, v0
    v_mul_f32 v0, 0x3c23d70a, v0
    v_cvt_pk_bf16_f32 v0, v0, v0
    buffer_store_dword v0, v246, s[16:19], 0 offen
    s_waitcnt vmcnt(0)''')
    L_.append("Lend:\n    s_endpgm")
    for lab, t in stubs:
        L_.append(f"Lrare_{lab}:\n    s_call_b64 s[{RET}:{RET+1}], Lrarefn_{t}\n    s_branch Lret_{lab}")
    for t in range(6):
        r = rare(t); assert not check_trace(r); put(r)
    L_.append("    s_endpgm")
    hdr = open("standalone__gqa_softmax__near_ridge.s.ref").read().split("; Override launch")[0]
    src = hdr + f"; @launch grid=(256,1,1) block=(256,1,1) lds={LDS_BYTES}\n"
    src += f""".amdgcn_target "amdgcn-amd-amdhsa--gfx950"
.text
.globl {NAME}
.p2align 8
.type {NAME},@function
{NAME}:
"""
    if cfg.stamps or cfg.fail_us: src += "    s_memrealtime s[62:63]\n"
    src += "\n".join(L_) + "\n"
    src += ".p2align 8\n.fill 8192, 4, 0xbf800000\n" if cfg.prefetch_code else ""
    src += f""".section .rodata,"a"
.p2align 6
.amdhsa_kernel {NAME}
  .amdhsa_next_free_vgpr 512
  .amdhsa_next_free_sgpr 102
  .amdhsa_accum_offset 256
  .amdhsa_group_segment_fixed_size 0
  .amdhsa_kernarg_size 48
  .amdhsa_user_sgpr_count 2
  .amdhsa_user_sgpr_kernarg_segment_ptr 1
  .amdhsa_system_sgpr_workgroup_id_x 1
.end_amdhsa_kernel
"""
    return src

if __name__ == "__main__":
    out = sys.argv[1]
    for a in sys.argv[2:]:
        k, v = a.split("=")
        setattr(cfg, k, eval(v) if k not in ("ldflag", "stflag") else v.replace("+", " "))
    open(out, "w").write(build())
```

```python
import re

def vr(i, n=1): return [f"v{i+k}" for k in range(n)]
def ar(i, n=1): return [f"a{i+k}" for k in range(n)]
def sr(i, n=1): return [f"s{i+k}" for k in range(n)]
def R(f, i, n=1):
    return f"{f}{i}" if n == 1 else f"{f}[{i}:{i+n-1}]"
def regs(f, i, n=1): return [f"{f}{i+k}" for k in range(n)]

class Op:
    __slots__ = ("text", "kind", "rd", "wr", "srcC", "lo", "hi", "covers", "vmcovers", "lgkm0", "vm0", "tag", "dl", "preds", "pos",
                 "perm", "isload", "stdata", "note", "lgkmN", "vmN", "states", "prio", "cyc")
    def __init__(self, text, kind, rd=(), wr=(), srcC=(), lo=None, hi=None, perm=False, isload=False, stdata=(), note=""):
        self.text, self.kind = text, kind
        self.rd, self.wr, self.srcC = list(rd), list(wr), list(srcC)
        self.lo, self.hi = lo, hi
        self.covers = None; self.vmcovers = None; self.lgkm0 = False; self.vm0 = False
        self.tag = None; self.dl = None; self.preds = []; self.pos = None
        self.perm = perm; self.isload = isload; self.stdata = list(stdata); self.note = note
        self.lgkmN = None; self.vmN = None; self.states = 1; self.prio = 0; self.cyc = None
    def w(self, lo=None, hi=None, prio=None):
        if lo is not None: self.lo = lo
        if hi is not None: self.hi = hi
        if prio is not None: self.prio = prio
        return self
    def render(self):
        if self.kind == "wait":
            parts = []
            if self.vmN is not None: parts.append(f"vmcnt({self.vmN})")
            if self.lgkmN is not None: parts.append(f"lgkmcnt({self.lgkmN})")
            assert parts, "unresolved wait"
            return "s_waitcnt " + " ".join(parts)
        return self.text

def mfma16(D, A, B, C):
    ct = "0" if C is None else R(C[0], C[1], 4)
    rd = regs(*A, 4) + regs(*B, 4) + ([] if C is None else regs(*C, 4))
    return Op(f"v_mfma_f32_16x16x32_bf16 {R(D[0], D[1], 4)}, {R(A[0], A[1], 4)}, {R(B[0], B[1], 4)}, {ct}", "mfma", rd, regs(*D, 4),
              srcC=[] if C is None else regs(*C, 4))
def _opr(x):
    return [x] if isinstance(x, str) and re.fullmatch(r"[vas]\d+|vcc|m0", x) else []
def valu(mn, d, *src, kind="valu", extra_rd=(), extra_wr=(), mods=""):
    rd = []
    for s in src: rd += _opr(s.lstrip("-") if isinstance(s, str) else s)
    return Op(f"{mn} {d}, " + ", ".join(str(s) for s in src) + mods, kind, rd + list(extra_rd), _opr(d) + list(extra_wr))
def trans(mn, d, s): return valu(mn, d, s, kind="trans")
def perm(mn, a, b): return Op(f"{mn} {a}, {b}", "valu", [a, b], [a, b], perm=True)
def salu(mn, d, *src, scc_wr=True, scc_rd=False):
    rd = []
    for s in src: rd += _opr(s)
    wr = _opr(d)
    if scc_wr: wr = wr + ["scc"]
    if scc_rd: rd = rd + ["scc"]
    return Op(f"{mn} {d}, " + ", ".join(str(s) for s in src), "salu", rd, wr)
def scmp(mn, a, b): return Op(f"{mn} {a}, {b}", "salu", _opr(a) + _opr(b), ["scc"])
def ds_read(mn, f, d, n, addr, off, extra_rd=()):
    assert 0 <= off < 65536
    return Op(f"{mn} {R(f, d, n)}, {addr} offset:{off}", "lds", [addr] + list(extra_rd), regs(f, d, n), isload=True)
def ds_write(mn, addr, f, s, n, off, extra_rd=(), extra_wr=()):
    assert 0 <= off < 65536
    return Op(f"{mn} {addr}, {R(f, s, n)} offset:{off}", "lds", [addr] + regs(f, s, n) + list(extra_rd), list(extra_wr), stdata=regs(f, s, n))
def dma(voff, srd, soff, off, flags, extra_rd=(), extra_wr=()):
    o = f" offset:{off}" if off else ""
    fl = f" {flags}" if flags else ""
    return Op(f"buffer_load_dwordx4 {voff}, s[{srd}:{srd+3}], {soff} offen{o}{fl} lds", "vmem", [voff, "m0"] + _opr(soff) + list(extra_rd), list(extra_wr))
def bstore(f, s, voff, srd, soff, off, flags, extra_rd=()):
    o = f" offset:{off}" if off else ""
    fl = f" {flags}" if flags else ""
    return Op(f"buffer_store_dwordx4 {R(f, s, 4)}, {voff}, s[{srd}:{srd+3}], {soff} offen{o}{fl}", "vmem",
              [voff] + _opr(soff) + regs(f, s, 4) + list(extra_rd), [], stdata=regs(f, s, 4))
def wait(lds=None, vm=None, lgkm0=False, vm0=False, extra_rd=(), extra_wr=()):
    rg = []
    for o in (lds or []): rg += o.wr if o.isload else []
    op = Op("", "wait", rg + list(extra_rd), rg + list(extra_wr))
    op.covers = lds; op.vmcovers = vm; op.lgkm0 = lgkm0; op.vm0 = vm0
    return op
def barrier(rd=(), wr=()): return Op("s_barrier", "bar", rd, wr)
def branch(text, rd=(), wr=()): return Op(text, "branch", rd, wr)
def label(name): return Op(f"{name}:", "label")
def nop(n):
    o = Op(f"s_nop {n-1}", "nop"); o.states = n; return o
def raw(text, kind="salu", rd=(), wr=()): return Op(text, kind, rd, wr)

ISV = ("valu", "trans")
def is_vgpr(r): return r[0] in "va" and r[1:].isdigit()

def dist(p, c, reg, typ):
    if not is_vgpr(reg):
        if reg == "m0" and typ == "RAW" and p.kind == "salu" and c.kind == "vmem": return 1
        if typ == "RAW" and p.kind in ISV and reg[0] == "s" and c.kind == "vmem": return 5
        if typ == "RAW" and p.kind in ISV and (reg[0] == "s" or reg == "vcc") and c.kind in ISV: return 2
        if typ == "RAW" and p.kind in ISV and reg == "vcc" and c.kind == "branch": return 1
        return 0
    if c.kind in ("wait", "branch", "bar") or p.kind in ("wait", "branch", "bar"): return 0
    if typ == "RAW":
        if p.kind == "mfma":
            if c.kind == "mfma":
                if reg in c.srcC and c.srcC == p.wr and reg not in c.rd[:8]: return 0
                if reg in c.rd[:8]: return 8
                return 6
            return 8
        if p.kind in ISV:
            if c.kind == "mfma": return 2
            if c.perm: return 2
            if "readfirstlane" in c.text or "readlane" in c.text: return 1
            if p.kind == "trans" and c.kind == "valu": return 1
        return 0
    if typ == "WAW":
        if p.kind == "mfma" and c.kind != "mfma": return 8
        return 0
    if typ == "WAR":
        if p.kind == "mfma" and reg in p.srcC and c.kind in ISV: return 3
        if reg in p.stdata: return 2
        return 0

PSEUDO = ("wait", "branch", "bar")
def build_deps(ops):
    lastw, readers, lastp = {}, {}, {}
    for o in ops:
        P = {}
        def add(p, reg, typ):
            if p is o: return
            d = dist(p, o, reg, typ)
            P[id(p)] = (p, max(d, P.get(id(p), (p, 0))[1]))
        for r in o.rd:
            if r in lastw: add(lastw[r], r, "RAW")
            if r in lastp: add(lastp[r], r, "RAW")
        for r in o.wr:
            if r in lastw: add(lastw[r], r, "WAW")
            if r in lastp: add(lastp[r], r, "WAW")
            for q in readers.get(r, []): add(q, r, "WAR")
        if o.kind == "wait":
            for c in (o.covers or []) + (o.vmcovers or []):
                if c.pos == "seg": P[id(c)] = (c, 0)
        o.preds = list(P.values())
        for r in o.rd: readers.setdefault(r, []).append(o)
        for r in o.wr:
            if o.kind in PSEUDO: lastp[r] = o
            else:
                lastw[r] = o; readers[r] = []

def cls(o):
    if o.kind in ISV: return "v"
    if o.kind in ("lds", "vmem"): return "m"
    return "s"
def is_store(o): return o.kind == "vmem" and bool(o.stdata)
def is_pk(o): return o.text.startswith("v_pk_")
SOFT_LDS = 18
def soft(p, o): return SOFT_LDS if (o.kind == "wait" and p.kind == "lds" and o.covers and any(p is c for c in o.covers)) else 0
def macro(ops):
    rd, wr = [], []
    for o in ops:
        rd += [r for r in o.rd if r not in rd]; wr += [r for r in o.wr if r not in wr]
    m = Op("\n    ".join(o.text for o in ops), "valu", rd, wr)
    m.states = len(ops); m.cyc = sum(cost(o) for o in ops)
    return m
def cost(o):
    if o.cyc is not None: return o.cyc
    if o.kind == "trans" or o.perm: return 8
    if o.kind == "valu": return 4
    if o.kind == "lds": return 4 + 4 * len(o.stdata)
    if o.kind == "vmem": return 4 if o.stdata else 8
    if o.kind == "branch": return 4
    return 0

def gap_cycles(items):
    t = 4
    minlen = 16
    sawv = False
    for o in items:
        c = cls(o)
        if c == "s":
            t += 4 * o.states + (4 if o.kind == "branch" else 0)
            if o.kind == "bar": minlen += 10
        else:
            t = max(t, 8)
            if c == "m":
                if sawv: t += 8
                sawv = False
                if is_store(o): minlen = max(minlen, t + 20)
            else:
                if is_pk(o): t = max(t, 28)
                sawv = True
            t += cost(o)
    return max(minlen, t)
def estimate(out):
    tot, cur, started = 0, [], False
    for o in out:
        if o.kind == "label": continue
        if o.kind == "mfma":
            tot += gap_cycles(cur) if started else max(0, gap_cycles(cur) - 8) * (1 if cur else 0)
            cur = []; started = True
        else: cur.append(o)
    tot += gap_cycles(cur)
    return tot

def schedule(ops, budget=None, tail=(), verbose=False, name=""):
    if budget is None:
        best = None
        nm = max(1, sum(1 for o in ops if o.kind == "mfma"))
        dem = sum(cost(o) for o in ops) / nm
        base = max(8.0, dem)
        for f in (0, 0.05, 0.1, 0.2, 0.3, 0.5, 0.75, 1.0, 1.5, 2.0, 3.0, 4.0):
            r = _schedule(ops, base + f, tail)
            e = estimate(r)
            if best is None or e < best[0]: best = (e, base + f)
        budget = best[1]
    out = _schedule(ops, budget, tail)
    if verbose:
        nm = sum(1 for o in out if o.kind == "mfma")
        print(f"  sched {name}: {nm} mfma, {len(out)} instrs, budget {budget:.2f}, port {sum(cost(o) for o in out) + 8*nm}, est {estimate(out)} cyc, nops {sum(o.states for o in out if o.kind=='nop')}")
    return out

def _schedule(ops, budget, tail=()):
    for o in list(ops) + list(tail): o.pos = "seg"
    build_deps(list(ops) + list(tail))
    mf = [o for o in ops if o.kind == "mfma"]
    N = len(mf)
    mpos = {id(o): i for i, o in enumerate(mf)}
    succ = {id(o): [] for o in list(ops) + list(tail)}
    for o in list(ops) + list(tail):
        for p, d in o.preds: succ[id(p)].append((o, d))
    tailset = set(id(o) for o in tail)
    rank = {"s": 0, "m": 1, "v": 2}
    for o in reversed(ops):
        if o.kind == "mfma": continue
        dl = N - 1 if o.hi is None else min(o.hi, N - 1)
        for s_, d in succ[id(o)]:
            if id(s_) in tailset: continue
            if s_.kind == "mfma": dl = min(dl, mpos[id(s_)] - 1 - (1 if d > 0 else 0))
            else:
                lag = 1 if (d > 0 or cost(o) + cost(s_) > 8 or rank[cls(s_)] < rank[cls(o)] or cls(s_) == "s") else 0
                if soft(o, s_): lag = SOFT_LDS // 3 + 1
                dl = min(dl, s_.dl - lag)
        o.dl = dl
    out = []
    at = {}
    clock = [0]
    pend = [o for o in ops if o.kind != "mfma"]
    def emit(o):
        for p, d in o.preds:
            if id(p) not in at:
                assert p.kind != "mfma", f"order violation: {o.text} needs future mfma {p.text}"
                emit(p)
        need = 0
        for p, d in o.preds: need = max(need, d - (clock[0] - at[id(p)] - 1))
        if need > 0:
            out.append(nop(need)); clock[0] += need
        at[id(o)] = clock[0] + (o.states - 1 if o.kind == 'valu' else 0); clock[0] += o.states
        out.append(o)
        for i, x in enumerate(pend):
            if x is o: del pend[i]; break
    order = {id(o): i for i, o in enumerate(ops)}
    key = lambda o: (o.dl - o.prio, order[id(o)])
    pool = 0.0
    for g in range(-1, N):
        if g < 0:
            for o in sorted([o for o in pend if o.dl < 0], key=lambda o: order[id(o)]):
                if id(o) not in at: emit(o)
            continue
        emit(mf[g])
        pool += budget - 8
        picks = {"s": [], "m": [], "v": []}
        picked = {}
        def seq(): return picks["s"] + picks["m"] + picks["v"]
        def vslot(o):
            v = picks["v"]
            k = next((i for i, x in enumerate(v) if is_pk(x)), None)
            if k is None or is_pk(o): return len(v)
            after = set(id(x) for x in v[k:])
            if any(id(p) in after for p, _ in o.preds): return len(v)
            return k
        def ready(o):
            if id(o) in picked: return False
            if o.lo is not None and g < o.lo: return False
            c = cls(o)
            pos = clock[0] + len(picks["s"]) + (len(picks["m"]) if c != "s" else 0) + (sum(x.states for x in picks["v"][:vslot(o)]) if c == "v" else 0)
            for p, d in o.preds:
                d = max(d, soft(p, o)) if o.dl > g else d
                if id(p) in at:
                    if pos - at[id(p)] - 1 < d: return False
                elif id(p) in picked:
                    if rank[cls(p)] > rank[c]: return False
                    sq = seq(); ip = 0
                    for x in sq:
                        ip += x.states
                        if x is p: break
                    if pos - (clock[0] + ip - 1) - 1 < d: return False
                else: return False
            return True
        def take(o):
            c = cls(o)
            if c == "v": picks[c].insert(vslot(o), o)
            else: picks[c].append(o)
            picked[id(o)] = 1
        def untake(o):
            picks[cls(o)] = [x for x in picks[cls(o)] if x is not o]; del picked[id(o)]
        def length(extra=None):
            if extra is None: return gap_cycles(seq())
            take(extra); r = gap_cycles(seq()); untake(extra); return r
        limit = 16 + max(0.0, pool)
        while True:
            cand = sorted([o for o in pend if ready(o)], key=key)
            if not cand: break
            forced = [o for o in cand if o.dl <= g]
            if forced: take(forced[0]); continue
            cur = length()
            lim = max(limit, cur)
            if not picks["s"]:
                z = [o for o in cand if cls(o) == "s" and length(o) <= lim]
                if z: take(z[0]); continue
            fit = [o for o in cand if cls(o) != "s" and length(o) <= lim]
            if fit:
                o = fit[0]
                if cost(o) == 4 and not picks["m"] and not picks["v"] and limit < 20:
                    take(o)
                    more = [x for x in pend if ready(x) and cls(x) != "s" and length(x) <= lim]
                    if not more:
                        big = [x for x in fit if cost(x) == 8]
                        if big:
                            untake(o); take(big[0])
                    continue
                take(o); continue
            z = [o for o in cand if cls(o) == "s" and length(o) <= lim]
            if z: take(z[0]); continue
            break
        pool -= max(0, length() - 16)
        pool = max(pool, -16.0)
        for o in seq():
            if id(o) not in at: emit(o)
    for o in sorted(list(pend), key=lambda o: order[id(o)]):
        if id(o) not in at: emit(o)
    for o in tail: emit(o)
    for o in out: o.pos = None
    return out

def linear(ops):
    return _schedule([], 8.0, tail=ops)

def resolve_waits(trace):
    lds, vm = [], []
    for o in trace:
        if o.kind == "lds": lds.append(o)
        elif o.kind == "vmem": vm.append(o)
        elif o.kind == "wait":
            if o.lgkm0: o.lgkmN = 0
            elif o.covers:
                idx = max(i for i, x in enumerate(lds) if any(x is c for c in o.covers))
                assert all(any(x is c for x in lds) for c in o.covers)
                o.lgkmN = min(15, len(lds) - 1 - idx)
            if o.vm0: o.vmN = 0
            elif o.vmcovers:
                idx = max(i for i, x in enumerate(vm) if any(x is c for c in o.vmcovers))
                assert all(any(x is c for x in vm) for c in o.vmcovers), "vm cover not issued yet"
                o.vmN = min(63, len(vm) - 1 - idx)

def check_trace(trace):
    errs = []
    clock = 0
    lastw, readers = {}, {}
    out_lds, out_vm = [], []
    for o in trace:
        if o.kind == "label": continue
        if o.kind == "wait":
            if o.lgkmN is not None:
                while len(out_lds) > o.lgkmN: out_lds.pop(0)
            if o.vmN is not None:
                while len(out_vm) > o.vmN: out_vm.pop(0)
            clock += 1
            continue
        if o.kind in ("nop",):
            clock += o.states; continue
        if o.kind not in ("branch", "bar"):
            for q in out_lds + out_vm:
                if q.isload:
                    for r in q.wr:
                        if is_vgpr(r) and (r in o.rd or r in o.wr): errs.append(f"uncovered load: [{q.text}] -> [{o.text}] on {r}")
            def chk(p, t, r, typ):
                d = dist(p, o, r, typ)
                if clock - t - 1 < d: errs.append(f"hazard {typ} {r}: [{p.text}] -> [{o.text}] have {clock-t-1} need {d}")
            for r in o.rd:
                if r in lastw: chk(*lastw[r], r, "RAW")
            for r in o.wr:
                if r in lastw: chk(*lastw[r], r, "WAW")
                for p, t in readers.get(r, []): chk(p, t, r, "WAR")
            clock += o.states - 1
            for r in o.rd: readers.setdefault(r, []).append((o, clock))
            for r in o.wr:
                lastw[r] = (o, clock); readers[r] = []
            for r in list(readers):
                if len(readers[r]) > 6: readers[r] = readers[r][-6:]
        elif o.kind == "branch":
            for r in o.rd:
                if r == "vcc" and r in lastw:
                    p, t = lastw[r]
                    if clock - t - 1 < dist(p, o, r, "RAW"): errs.append("vcc->branch")
        if o.kind == "lds": out_lds.append(o)
        if o.kind == "vmem": out_vm.append(o)
        clock += 1
    return errs
```

```python
import sys, math, struct
sys.path.insert(0, "gen")
from fw import *

class Cfg:
    ldflag = "nt"; stflag = "sc1"; stamps = False; thr_log2 = 32; prefetch_code = True; verbose = True
    force_slow = False
cfg = Cfg()

NAME = "standalone__gqa_softmax__near_ridge_kernel"
GS = 1056; TILE = 8 * GS; PAIR = 2 * TILE; RING = 3 * PAIR; QBASE = RING; QW = 3 * TILE; OGS = 1040
LDS_BYTES = QBASE + 4 * QW
def O(t, db): return ("v", 32 * t + 4 * db)
def S(p, i=0): return 192 + 8 * (p % 2) + i
def P(p, i=0): return 208 + 4 * (p % 2) + i
def LA(t): return 216 + 4 * t
def NEGM(t): return f"v{240 + t}"
vK, vV, vLin, vQ, vOw, vOr = "v246", "v247", "v248", "v249", "v250", "v251"
TMP = 252
def Q(t, s): return ("a", 16 * t + 4 * s)
def K(par, kb, s): return ("a", 96 + 32 * par + 16 * kb + 4 * s)
def V(par, db): return ("a", 160 + 32 * par + 4 * db)
ONES = ("a", 224); STG = 228
SQ, SK, SV, SO = 4, 8, 12, 16
sW, sC, sTHR, sCNT, sKV, sWR, sRD, sWP, sQG, sQL, sDL, sCP, sCM, sNC = "s20 s21 s22 s23 s24 s25 s26 s27 s28 s29 s32 s33 s34 s35".split()
FLAG = (76, 78)
NSUB = 144
C_SCALE = (128 ** -0.5) * math.log2(math.e)
def f2u(x): return struct.unpack("<I", struct.pack("<f", x))[0]
def JT(p): return divmod(p, 6)

def QK(p, par=None):
    J, t = JT(p); par = J % 2 if par is None else par
    ops = []
    for kb in range(2):
        for s in range(4):
            D = ("v", S(p, 4 * kb))
            ops.append(mfma16(D, K(par, kb, s), Q(t, s), None if s == 0 else D))
    return ops
def PV(p, par=None, first=None):
    J, t = JT(p); par = J % 2 if par is None else par
    first = (J % 12 == 0) if first is None else first
    la = ("v", LA(t))
    return [mfma16(la, ONES, ("v", P(p)), None if first else la)] + \
           [mfma16(O(t, db), V(par, db), ("v", P(p)), None if first else O(t, db)) for db in range(8)]
def colmax(ops, x, a, b):
    ops.append(valu("v_max3_f32", a, x[0], x[1], x[2]))
    ops.append(valu("v_max3_f32", a, a, x[3], x[4]))
    ops.append(valu("v_max3_f32", a, a, x[5], x[6]))
    ops.append(valu("v_max_f32", b, a, x[7]))
    ops.append(valu("v_max_f32", a, a, x[7]))
    ops.append(perm("v_permlane16_swap_b32", a, b))
    ops.append(valu("v_max_f32", a, a, b))
    ops.append(valu("v_mov_b32", b, a))
    ops.append(perm("v_permlane32_swap_b32", a, b))
    ops.append(valu("v_max_f32", a, a, b))
def SMcore(p, t):
    ops = []
    x = [f"v{S(p, i)}" for i in range(8)]
    for i in range(0, 8, 2):
        for k in (i, i + 1): ops.append(valu("v_fma_f32", x[k], x[k], sC, NEGM(t)))
        for k in (i, i + 1): ops.append(trans("v_exp_f32", x[k], x[k]))
        ops.append(valu("v_cvt_pk_bf16_f32", f"v{P(p, i // 2)}", x[i], x[i + 1]))
    return ops
def SM(p):
    J, t = JT(p)
    ops = []
    if J % 12 == 0:
        a, b = f"v{TMP + 2 * (p % 2)}", f"v{TMP + 1 + 2 * (p % 2)}"
        colmax(ops, [f"v{S(p, i)}" for i in range(8)], a, b)
        ops.append(valu("v_mul_f32", NEGM(t), sNC, a))
    return ops + SMcore(p, t)
def rdK(n, addr=vK, base=0):
    return [ds_read("ds_read_b128", *K(n % 2, kb, s), 4, addr, base + kb * 512 + s * 64, extra_rd=["bar"]) for kb in range(2) for s in range(4)]
def rdV(n, addr=vV, base=TILE):
    return [ds_read("ds_read_b64_tr_b16", "a", V(n % 2, db)[1] + 2 * kb, 2, addr, base + kb * 512 + db * 32, extra_rd=["bar"]) for db in range(8) for kb in range(2)]
def rdQ(t, blk=None):
    blk = t // 2 if blk is None else blk
    return [ds_read("ds_read_b128", *Q(t, s), 4, vQ, blk * TILE + (t % 2) * 512 + s * 64, extra_rd=[f"qok{t//2}", f"stg{t//2}"]) for s in range(4)]
kv_dma = {}
def m0set(base, off):
    return salu("s_add_u32", "m0", base, off) if off else salu("s_mov_b32", "m0", base, scc_wr=False)
def dmaKV(n):
    ops = []
    for srd, base in ((SK, 0), (SV, TILE)):
        for i in range(2):
            ops.append(m0set(sWR, base + 32 * i))
            d = dma(vLin, srd, sKV, 1024 * i, cfg.ldflag, extra_rd=["bar"])
            kv_dma.setdefault(n, []).append(d); ops.append(d)
    return ops
q_dma = {}
def dmaQ(h, G0, n, extra_rd=()):
    ops = []
    for i in range(n):
        ops.append(m0set(sQL, 32 * i))
        d = dma(vLin, SQ, sQG, 1024 * i, cfg.ldflag, extra_rd=extra_rd)
        q_dma[(h, G0 + i)] = d; ops.append(d)
    ops.append(salu("s_add_u32", sQG, sQG, 1024 * n))
    ops.append(salu("s_add_u32", sQL, sQL, GS * n))
    return ops
def dmaQblk(h, blk): return dmaQ(h, 8 * blk, 4) + dmaQ(h, 8 * blk + 4, 4)
def waitQ(h, blk): return wait(vm=[q_dma[(h, g)] for g in range(8 * blk, 8 * blk + 8)], extra_wr=[f"qok{blk}"])
def ring_adv():
    return [salu("s_add_u32", sKV, sKV, 8192),
            salu("s_add_u32", sWR, sRD, sWP),
            salu("s_add_u32", sRD, sRD, sCP),
            scmp("s_cmp_eq_u32", sRD, RING),
            salu("s_cselect_b32", sRD, 0, sRD, scc_wr=False, scc_rd=True),
            salu("s_cselect_b32", sDL, sCM, sCP, scc_wr=False, scc_rd=True),
            valu("v_add_u32", vK, sDL, vK), valu("v_add_u32", vV, sDL, vV)]
def EPI(t, h, check=True):
    l, r = LA(t), LA(t) + 2
    a = [trans("v_rcp_f32", f"v{r}", f"v{l}")]
    if check:
        f = FLAG[h]
        a.append(valu("v_cmp_ngt_f32", "vcc", sTHR, f"v{l}"))
        a.append(Op(f"s_or_b64 s[{f}:{f+1}], s[{f}:{f+1}], vcc", "salu", ["vcc", f"s{f}"], [f"s{f}", "scc"]))
    pk = []
    for i in range(0, 32, 2):
        b = 32 * t + i
        pk.append(Op(f"v_pk_mul_f32 v[{b}:{b+1}], v[{b}:{b+1}], v[{r}:{r+1}] op_sel_hi:[1,0]", "valu", vr(b, 2) + [f"v{r}"], vr(b, 2)))
    a.append(macro(pk))
    c, w = [], []
    for db in range(8):
        b = O(t, db)[1]
        c.append(valu("v_cvt_pk_bf16_f32", f"v{b}", f"v{b}", f"v{b+1}"))
        c.append(valu("v_cvt_pk_bf16_f32", f"v{b+1}", f"v{b+2}", f"v{b+3}"))
        o = ds_write("ds_write_b64", vOw, "v", b, 2, (t // 2) * 8 * OGS + (t % 2) * 512 + db * 32,
                     extra_wr=[f"stg{k}" for k in range(t // 2 + 1)] if db == 0 else [], extra_rd=[f"stg{t//2}"] if db else [])
        o.wr.append(f"ost{t}_{db}"); w.append(o)
    return a + c + w
def ost(blk): return [f"ost{t}_{db}" for t in (2 * blk, 2 * blk + 1) for db in range(8)]
def STORE(quads, imm0=0, need=(), lo=None, hi=None, adv=True):
    rds = []
    for i, a in enumerate(quads):
        rd = ds_read("ds_read_b128", "a", a, 4, vOr, (imm0 + i) * OGS, extra_rd=list(need))
        rd.lo = lo; rd.hi = hi
        rds.append(rd)
    st = [wait(lds=rds)]
    for i, a in enumerate(quads): st.append(bstore("a", a, vLin, SO, sQG, 1024 * i, cfg.stflag))
    if adv: st.append(salu("s_add_u32", sQG, sQG, 1024 * len(quads)))
    return rds, st
def stamp(i):
    return [raw(f"s_memtime s[{40+2*i}:{41+2*i}]", "salu")] if cfg.stamps else []

def slot(u):
    ops = []
    if u + 1 < NSUB: ops += QK(u + 1)
    if u < NSUB: ops += SM(u)
    if 0 <= u - 1 < NSUB: ops += PV(u - 1)
    return ops
def nmf(ops): return sum(1 for o in ops if o.kind == "mfma")
def insert_wait(ops, w, after=None):
    rs = set(w.wr)
    k = -1 if after is None else next(i for i, o in enumerate(ops) if o is after)
    for i in range(k + 1, len(ops)):
        if ops[i].kind == "mfma" and rs & set(ops[i].rd):
            w.lo = nmf(ops[:i]) - 3
            ops.insert(i, w); return
    raise AssertionError
def seg_head(J, g0=0):
    ops = [barrier(rd=["prebar"], wr=["bar"]).w(hi=g0)]
    d = dmaKV(J + 3)
    for i, o in enumerate(d): o.hi = g0 + 6 + 5 * i
    kr = rdK(J + 1); vrd = rdV(J + 1)
    for i, o in enumerate(kr): o.hi = g0 + 18 + 5 * i
    for i, o in enumerate(vrd): o.hi = g0 + 46 + 3 * i
    return ops + d + kr + vrd, kr
def seg_end(J, n):
    w = wait(lgkm0=True, vm=kv_dma[J + 2], extra_rd=[vK, vV], extra_wr=["prebar"])
    w.lo = n - 1
    return ring_adv() + [w]

def segment(J):
    u0, u1 = 6 * J + 1, 6 * J + 7
    h, j = divmod(J, 12)
    head, kr = ([], []) if J == 23 else seg_head(J)
    extra, tail = [], []
    hook = lambda u: []
    qr = {}
    if 1 <= J <= 10:
        q = dmaQ(1, 4 + 2 * (J - 1), 2)
        for i, o in enumerate(q): o.lo = 44; o.hi = 64 + 5 * i
        extra += q
    elif 13 <= J <= 22:
        rds, st = STORE([STG + 8 * (J % 2), STG + 8 * (J % 2) + 4], lo=30, hi=50)
        for i, o in enumerate(st): o.hi = 70 + 8 * i
        extra += rds + st + [valu("v_add_u32", vOr, 2 * OGS, vOr)]
    if J == 11:
        def hook(u):
            o = []
            t = u - 65
            for t in ([0, 1, 2] if u == 67 else ([t] if 3 <= t <= 5 else [])):
                if t % 2 == 0: o.append(waitQ(1, t // 2))
                qr[t] = rdQ(t); o += qr[t]
            t = u - 67
            if 0 <= t <= 2: o += EPI(t, 0)
            return o
    if J == 12:
        head = head + EPI(3, 0) + EPI(4, 0) + EPI(5, 0)
        rds, st = STORE([STG + 4 * i for i in range(4)], lo=60)
        extra += [salu("s_sub_u32", sQG, sQG, 98304 + 24576)] + rds + st + [valu("v_add_u32", vOr, 4 * OGS, vOr)]
    if J == 23:
        quads = [96 + 4 * i for i in range(8)] + [160 + 4 * i for i in range(8)] + [STG + 4 * i for i in range(7)] + [96]
        head = [salu("s_add_u32", sQG, sQG, 98304 - 24576), valu("v_subrev_u32", vOr, 24 * OGS, vOr)]
        def stg(G): return STORE(quads[G:G + 4], imm0=G, need=ost(G // 8))
        def hook(u):
            t = u - 139
            o = EPI(t, 1) if 0 <= t <= 4 else []
            if t in (1, 3):
                for G in (4 * (t - 1), 4 * t):
                    rds, st = stg(G); o += rds + st
            return o
        tail = EPI(5, 1)
        r4, s4 = stg(16); r5, s5 = stg(20)
        tail += r4 + r5 + s4 + s5
    body = []
    for u in range(u0, u1): body += slot(u) + hook(u)
    if J == 11:
        for t in (0, 1): insert_wait(body, wait(lds=qr[t]), qr[t][-1])
    if kr: insert_wait(body, wait(lds=kr))
    nm = nmf(body)
    ops = head + body + extra
    if J < 23: ops += seg_end(J, nm)
    if J in (2, 4, 6, 8, 10, 14, 16, 18, 20, 22):
        ops += [salu("s_sub_u32", sCNT, sCNT, 1), scmp("s_cmp_lg_u32", sCNT, 0)]
        tail = [branch(f"s_cbranch_scc1 Lloop{h}", ["scc"])]
    if J == 12: ops += [salu("s_mov_b32", sCNT, 5, scc_wr=False)]
    return schedule(ops, tail=tail, verbose=cfg.verbose and J in (1, 2, 11, 12, 13, 14, 23), name=f"seg{J}")

def setup():
    o = []
    A = o.append
    A(raw("s_cmp_ge_u32 s2, 256")); A(raw("s_cbranch_scc1 Lend"))
    o += stamp(0)
    A(raw("s_load_dwordx4 s[36:39], s[0:1], 0")); A(raw("s_load_dwordx4 s[64:67], s[0:1], 16"))
    if cfg.stamps: A(raw("s_load_dwordx2 s[68:69], s[0:1], 40"))
    t = [f"v{i}" for i in range(1, 7)]
    A(valu("v_lshrrev_b32", t[0], 6, "v0"))
    A(valu("v_and_b32", t[1], 63, "v0"))
    A(valu("v_readfirstlane_b32", sW, t[0]))
    A(valu("v_lshlrev_b32", vLin, 4, t[1]))
    A(valu("v_and_b32", t[2], 15, t[1]))
    A(valu("v_lshrrev_b32", t[3], 4, t[1]))
    if cfg.prefetch_code:
        A(raw("s_getpc_b64 s[70:71]", wr=["s70", "s71"]))
        A(salu("s_and_b32", "s70", "s70", "0xffffff00"))
        A(salu("s_mul_i32", "s72", sW, 6144, scc_wr=False))
        A(valu("v_add_u32", t[4], "s72", vLin))
        for i in range(6):
            if i == 4: A(valu("v_add_u32", t[4], 4096, t[4]))
            A(Op(f"global_load_dwordx4 a[{STG}:{STG+3}], {t[4]}, s[70:71] offset:{(i%4)*1024}", "vmem", [t[4]], []))
    A(salu("s_mul_i32", sQL, sW, QW, scc_wr=False)); A(salu("s_add_u32", sQL, sQL, QBASE))
    A(salu("s_mul_i32", sQG, sW, 24576, scc_wr=False))
    A(salu("s_lshl_b32", sKV, sW, 11))
    A(salu("s_mul_i32", sWP, sW, 2 * GS, scc_wr=False))
    A(salu("s_mov_b32", sWR, sWP, scc_wr=False))
    A(salu("s_mul_i32", "s73", "s2", 196608, scc_wr=False))
    for srd in (SK, SV, SQ, SO):
        A(salu("s_mov_b32", f"s{srd+2}", 196608, scc_wr=False)); A(salu("s_mov_b32", f"s{srd+3}", "0x20000", scc_wr=False))
    late = []
    B = late.append
    B(valu("v_and_b32", t[4], 7, t[2])); B(valu("v_lshrrev_b32", t[5], 3, t[2]))
    B(valu("v_mul_u32_u24", vK, GS, t[4])); B(valu("v_lshl_add_u32", vK, t[5], 8, vK)); B(valu("v_lshl_add_u32", vK, t[3], 4, vK))
    B(valu("v_mul_u32_u24", vOw, OGS, t[4])); B(valu("v_lshl_add_u32", vOw, t[5], 8, vOw)); B(valu("v_lshl_add_u32", vOw, t[3], 3, vOw))
    B(valu("v_and_b32", t[4], 1, t[3])); B(valu("v_lshrrev_b32", t[5], 2, t[2])); B(valu("v_lshl_add_u32", t[4], t[4], 2, t[5]))
    B(valu("v_mul_u32_u24", vV, GS, t[4])); B(valu("v_lshrrev_b32", t[5], 1, t[3])); B(valu("v_lshl_add_u32", vV, t[5], 8, vV))
    B(valu("v_and_b32", t[5], 3, t[2])); B(valu("v_lshl_add_u32", vV, t[5], 3, vV))
    B(valu("v_add_u32", vQ, sQL, vK)); B(valu("v_add_u32", vOw, sQL, vOw)); B(valu("v_add_u32", vOr, sQL, vLin))
    B(salu("s_mov_b32", sC, hex(f2u(C_SCALE)), scc_wr=False)); B(salu("s_mov_b32", sNC, hex(f2u(-C_SCALE)), scc_wr=False))
    B(salu("s_mov_b32", sTHR, hex(f2u(0.0 if cfg.force_slow else 2.0 ** cfg.thr_log2)), scc_wr=False))
    B(salu("s_mov_b32", sCP, PAIR, scc_wr=False)); B(salu("s_mov_b32", sCM, -2 * PAIR, scc_wr=False))
    B(raw(f"s_mov_b64 s[{FLAG[0]}:{FLAG[0]+1}], 0")); B(raw(f"s_mov_b64 s[{FLAG[1]}:{FLAG[1]+1}], 0"))
    B(salu("s_mov_b32", sCNT, 5, scc_wr=False))
    B(valu("v_mov_b32", t[0], "0x3f803f80"))
    for i in range(4): B(valu("v_accvgpr_write_b32", f"a{ONES[1]+i}", t[0]))
    o += late
    A(raw("s_waitcnt lgkmcnt(0)"))
    for srd, p in ((SK, 38), (SV, 64), (SQ, 36), (SO, 66)):
        A(salu("s_add_u32", f"s{srd}", f"s{p}", "s73")); A(salu("s_addc_u32", f"s{srd+1}", f"s{p+1}", 0, scc_rd=True))
    return o

def first():
    nxt = lambda: [salu("s_add_u32", sKV, sKV, 8192), salu("s_add_u32", sWR, sWR, PAIR)]
    o = setup() + dmaKV(0) + nxt() + dmaQblk(0, 0) + dmaQblk(0, 1)
    o += stamp(1)
    o += [wait(vm=kv_dma[0] + [q_dma[(0, 7)]]), barrier()]
    o += stamp(2)
    kr = rdK(0); q0 = rdQ(0); q1 = rdQ(1); vv = rdV(0)
    o += kr[:4] + q0 + kr[4:] + q1 + vv
    o += dmaKV(1) + nxt()
    o += [valu("v_add_u32", vK, PAIR, vK), valu("v_add_u32", vV, PAIR, vV)]
    o.append(wait(lds=kr + q0))
    out = linear(o)
    d = dmaQblk(0, 2)
    for i, x in enumerate(d): x.hi = i
    g = d + QK(0) + [wait(lds=q1)] + QK(1) + SM(0) + SM(1) + [wait(lds=vv)] + PV(0) + PV(1)
    d2 = dmaKV(2) + [salu("s_add_u32", sKV, sKV, 8192), salu("s_mov_b32", sWR, sWP, scc_wr=False), salu("s_mov_b32", sRD, PAIR, scc_wr=False),
                     salu("s_add_u32", sQG, sQG, 98304 - 24576), salu("s_sub_u32", sQL, sQL, QW)]
    q2, q3 = rdQ(2), rdQ(3)
    out += schedule(g + d2, tail=[waitQ(0, 1)] + q2 + q3 + [wait(lds=q2)], verbose=cfg.verbose, name="g0")
    out += stamp(3)
    g = QK(2) + [wait(lds=q3)] + QK(3) + SM(2) + SM(3) + PV(2) + PV(3)
    k1, v1 = rdK(1), rdV(1)
    q4, q5 = rdQ(4), rdQ(5)
    tail = [wait(vm=kv_dma[1]), barrier()] + k1 + v1 + dmaKV(3) + [waitQ(0, 2)] + q4 + q5 + [wait(lds=q4)]
    out += schedule(g, tail=tail, verbose=cfg.verbose, name="g1")
    out += stamp(4)
    g = QK(4) + [wait(lds=q5)] + QK(5) + SM(4) + QK(6) + SM(5) + PV(4) + QK(7) + SM(6) + PV(5)
    q = dmaQ(1, 0, 4)
    for x in q: x.lo = 12
    g += q + seg_end(0, nmf(g))
    out += schedule(g, verbose=cfg.verbose, name="g2")
    return out

def slow():
    o = []
    A = o.append
    mreg = lambda t: NEGM(t)
    vKs, vVs = vK, vV
    A(label("Lslow"))
    A(raw("s_waitcnt vmcnt(0) lgkmcnt(0)"))
    A(salu("s_mul_i32", sQL, sW, QW, scc_wr=False)); A(salu("s_add_u32", sQL, sQL, QBASE))
    A(salu("s_mul_i32", sQG, sW, 24576, scc_wr=False)); A(salu("s_add_u32", sQG, sQG, "s81"))
    t0, t1, t2 = f"v{TMP}", f"v{TMP+1}", f"v{TMP+2}"
    A(valu("v_bfe_u32", t0, vLin, 8, 1)); A(valu("v_bfe_u32", t1, vLin, 6, 2)); A(valu("v_lshl_add_u32", t0, t0, 2, t1))
    A(valu("v_mul_u32_u24", vVs, GS, t0)); A(valu("v_bfe_u32", t1, vLin, 9, 1)); A(valu("v_lshl_add_u32", vVs, t1, 8, vVs))
    A(valu("v_bfe_u32", t1, vLin, 4, 2)); A(valu("v_lshl_add_u32", vVs, t1, 3, vVs)); A(valu("v_add_u32", vVs, sQL, vVs))
    A(valu("v_add_u32", vOr, sQL, vLin))
    def dma8(srd, soff, base):
        for half in range(2):
            for i in range(4):
                A(salu("s_add_u32", "m0", sQL, base + 4 * GS * half + 32 * i))
                A(dma(vLin, srd, soff, 1024 * i, ""))
            A(salu("s_add_u32", soff, soff, 4096))
    A(salu("s_mov_b32", "s82", sQG, scc_wr=False))
    for blk in range(3): dma8(SQ, "s82", blk * TILE)
    A(raw("s_waitcnt vmcnt(0)"))
    for t in range(6): o.extend(rdQ(t))
    for i in range(192): A(valu("v_mov_b32", f"v{i}", 0))
    for i in range(24): A(valu("v_mov_b32", f"v{LA(0)+i}", 0))
    for t in range(6): A(valu("v_mov_b32", mreg(t), "0xff800000"))
    A(salu("s_mov_b32", "s82", "s81", scc_wr=False)); A(salu("s_mov_b32", "s83", "s81", scc_wr=False))
    A(salu("s_mov_b32", sCNT, 12, scc_wr=False))
    A(wait(lgkm0=True))
    A(label("Lslowloop"))
    dma8(SK, "s82", 0); dma8(SV, "s83", TILE)
    A(raw("s_waitcnt vmcnt(0)"))
    o.extend(rdK(0, addr=vQ) + rdV(0, addr=vVs))
    A(wait(lgkm0=True))
    for t in range(6):
        o.extend(QK(t, par=0))
        x = [f"v{S(t, i)}" for i in range(8)]
        colmax(o, x, t0, t1)
        A(valu("v_max_f32", t0, t0, mreg(t)))
        A(valu("v_sub_f32", t1, mreg(t), t0))
        A(valu("v_mul_f32", t1, sC, t1))
        A(trans("v_exp_f32", t1, t1))
        A(valu("v_mov_b32", mreg(t), t0))
        A(valu("v_mul_f32", t0, sNC, t0))
        for i in range(8): A(valu("v_fma_f32", x[i], x[i], sC, t0))
        for i in range(8): A(trans("v_exp_f32", x[i], x[i]))
        for i in range(4): A(valu("v_cvt_pk_bf16_f32", f"v{P(t, i)}", x[2 * i], x[2 * i + 1]))
        for i in range(32): A(valu("v_mul_f32", f"v{32*t+i}", f"v{32*t+i}", t1))
        for i in range(4): A(valu("v_mul_f32", f"v{LA(t)+i}", f"v{LA(t)+i}", t1))
        o.extend(PV(t, par=0, first=False))
    A(nop(12))
    A(salu("s_sub_u32", sCNT, sCNT, 1)); A(scmp("s_cmp_lg_u32", sCNT, 0)); A(raw("s_cbranch_scc1 Lslowloop", "branch"))
    for t in range(6): o.extend(EPI(t, 0, check=False))
    for G in range(0, 24, 4):
        rds, st = STORE([STG + 4 * i for i in range(4)], imm0=G)
        o.extend(rds + st)
    A(raw("s_waitcnt vmcnt(0) lgkmcnt(0)"))
    A(raw("s_setpc_b64 s[30:31]", "branch"))
    r = linear(o)
    resolve_waits(r)
    errs = check_trace(r)
    assert not errs, errs[:5]
    return r

def build():
    kv_dma.clear(); q_dma.clear()
    pro = first()
    segs = [None] + [segment(J) for J in range(1, 24)]
    trace = pro + [o for s in segs[1:] for o in s]
    resolve_waits(trace)
    for grp in ([1, 3, 5, 7, 9], [2, 4, 6, 8, 10], [13, 15, 17, 19, 21], [14, 16, 18, 20, 22]):
        n = len(segs[grp[0]])
        assert all(len(segs[J]) == n for J in grp)
        for i in range(n):
            col = [segs[J][i] for J in grp]
            assert len(set((c.kind, c.text) for c in col)) == 1, [c.text for c in col]
            if col[0].kind == "wait":
                for f in ("lgkmN", "vmN"):
                    vals = [getattr(c, f) for c in col]
                    if vals[0] is not None:
                        for c in col: setattr(c, f, min(vals))
    errs = check_trace(trace)
    for e in errs[:20]: print("ERR", e)
    assert not errs
    L_ = []
    def put(ops):
        for o in ops:
            t = o.render()
            L_.append(t if o.kind == "label" else "    " + t)
    st = lambda i: put(stamp(i))
    put(pro); st(5)
    L_.append(".p2align 3\nLloop0:"); put(segs[1]); put(segs[2]); st(6)
    put(segs[11]); put(segs[12]); st(7)
    L_.append(".p2align 3\nLloop1:"); put(segs[13]); put(segs[14]); st(8)
    put(segs[23])
    for h in range(2):
        f = FLAG[h]
        L_.append(f"    s_cmp_eq_u64 s[{f}:{f+1}], 0\n    s_cbranch_scc1 Lok{h}\n    s_mov_b32 s81, {98304*h}\n    s_call_b64 s[30:31], Lslow\nLok{h}:")
    if cfg.stamps:
        L_.append("    s_waitcnt vmcnt(0)"); st(9)
        L_.append("    s_memrealtime s[60:61]\n    s_waitcnt lgkmcnt(0)")
        L_.append("    s_lshl_b32 s74, s2, 2\n    s_add_u32 s74, s74, s20\n    s_lshl_b32 s74, s74, 6\n    v_mov_b32 v16, s74")
        for i in range(10): L_.append(f"    v_mov_b32 v{i}, s{40+2*i}")
        L_.append("    v_mov_b32 v10, s60\n    v_mov_b32 v11, s62\n    s_mov_b64 exec, 1")
        for i in range(3): L_.append(f"    global_store_dwordx4 v16, v[{4*i}:{4*i+3}], s[68:69] offset:{16*i}")
    L_.append("Lend:\n    s_endpgm")
    put(slow())
    L_.append("    s_endpgm")
    hdr = open("standalone__gqa_softmax__near_ridge.s.ref").read().split("; Override launch")[0]
    src = hdr + f"; @launch grid=(256,1,1) block=(256,1,1) lds={LDS_BYTES}\n"
    src += f""".amdgcn_target "amdgcn-amd-amdhsa--gfx950"
.text
.globl {NAME}
.p2align 8
.type {NAME},@function
{NAME}:
"""
    if cfg.stamps: src += "    s_memrealtime s[62:63]\n"
    src += "\n".join(L_) + "\n"
    src += f""".section .rodata,"a"
.p2align 6
.amdhsa_kernel {NAME}
  .amdhsa_next_free_vgpr 512
  .amdhsa_next_free_sgpr 102
  .amdhsa_accum_offset 256
  .amdhsa_group_segment_fixed_size 0
  .amdhsa_kernarg_size 48
  .amdhsa_user_sgpr_count 2
  .amdhsa_user_sgpr_kernarg_segment_ptr 1
  .amdhsa_system_sgpr_workgroup_id_x 1
.end_amdhsa_kernel
"""
    return src

if __name__ == "__main__":
    out = sys.argv[1]
    for a in sys.argv[2:]:
        k, v = a.split("=")
        setattr(cfg, k, eval(v) if k not in ("ldflag", "stflag") else v.replace("+", " "))
    open(out, "w").write(build())
```

```python
import re

def vr(i, n=1): return [f"v{i+k}" for k in range(n)]
def ar(i, n=1): return [f"a{i+k}" for k in range(n)]
def sr(i, n=1): return [f"s{i+k}" for k in range(n)]
def R(f, i, n=1):
    return f"{f}{i}" if n == 1 else f"{f}[{i}:{i+n-1}]"
def regs(f, i, n=1): return [f"{f}{i+k}" for k in range(n)]

class Op:
    __slots__ = ("text", "kind", "rd", "wr", "srcC", "lo", "hi", "covers", "vmcovers", "lgkm0", "vm0", "tag", "dl", "preds", "pos",
                 "perm", "isload", "stdata", "note", "lgkmN", "vmN", "states", "prio", "cyc", "eager", "pk_at", "space")
    def __init__(self, text, kind, rd=(), wr=(), srcC=(), lo=None, hi=None, perm=False, isload=False, stdata=(), note=""):
        self.text, self.kind = text, kind
        self.rd, self.wr, self.srcC = list(rd), list(wr), list(srcC)
        self.lo, self.hi = lo, hi
        self.covers = None; self.vmcovers = None; self.lgkm0 = False; self.vm0 = False
        self.tag = None; self.dl = None; self.preds = []; self.pos = None
        self.perm = perm; self.isload = isload; self.stdata = list(stdata); self.note = note
        self.lgkmN = None; self.vmN = None; self.states = 1; self.prio = 0; self.cyc = None; self.eager = False; self.pk_at = None; self.space = None
    def w(self, lo=None, hi=None, prio=None):
        if lo is not None: self.lo = lo
        if hi is not None: self.hi = hi
        if prio is not None: self.prio = prio
        return self
    def render(self):
        if self.kind == "wait":
            parts = []
            if self.vmN is not None: parts.append(f"vmcnt({self.vmN})")
            if self.lgkmN is not None: parts.append(f"lgkmcnt({self.lgkmN})")
            assert parts, "unresolved wait"
            return "s_waitcnt " + " ".join(parts)
        return self.text

def mfma16(D, A, B, C):
    ct = "0" if C is None else R(C[0], C[1], 4)
    rd = regs(*A, 4) + regs(*B, 4) + ([] if C is None else regs(*C, 4))
    return Op(f"v_mfma_f32_16x16x32_bf16 {R(D[0], D[1], 4)}, {R(A[0], A[1], 4)}, {R(B[0], B[1], 4)}, {ct}", "mfma", rd, regs(*D, 4),
              srcC=[] if C is None else regs(*C, 4))
def _opr(x):
    return [x] if isinstance(x, str) and re.fullmatch(r"[vas]\d+|vcc|m0", x) else []
def valu(mn, d, *src, kind="valu", extra_rd=(), extra_wr=(), mods=""):
    rd = []
    for s in src: rd += _opr(s.lstrip("-") if isinstance(s, str) else s)
    return Op(f"{mn} {d}, " + ", ".join(str(s) for s in src) + mods, kind, rd + list(extra_rd), _opr(d) + list(extra_wr))
def trans(mn, d, s): return valu(mn, d, s, kind="trans")
def perm(mn, a, b): return Op(f"{mn} {a}, {b}", "valu", [a, b], [a, b], perm=True)
def salu(mn, d, *src, scc_wr=True, scc_rd=False):
    rd = []
    for s in src: rd += _opr(s)
    wr = _opr(d)
    if scc_wr: wr = wr + ["scc"]
    if scc_rd: rd = rd + ["scc"]
    return Op(f"{mn} {d}, " + ", ".join(str(s) for s in src), "salu", rd, wr)
def scmp(mn, a, b): return Op(f"{mn} {a}, {b}", "salu", _opr(a) + _opr(b), ["scc"])
def ds_read(mn, f, d, n, addr, off, extra_rd=()):
    assert 0 <= off < 65536
    return Op(f"{mn} {R(f, d, n)}, {addr} offset:{off}", "lds", [addr] + list(extra_rd), regs(f, d, n), isload=True)
def ds_write(mn, addr, f, s, n, off, extra_rd=(), extra_wr=()):
    assert 0 <= off < 65536
    return Op(f"{mn} {addr}, {R(f, s, n)} offset:{off}", "lds", [addr] + regs(f, s, n) + list(extra_rd), list(extra_wr), stdata=regs(f, s, n))
def dma(voff, srd, soff, off, flags, extra_rd=(), extra_wr=()):
    o = f" offset:{off}" if off else ""
    fl = f" {flags}" if flags else ""
    return Op(f"buffer_load_dwordx4 {voff}, s[{srd}:{srd+3}], {soff} offen{o}{fl} lds", "vmem", [voff, "m0"] + sr(srd, 4) + _opr(soff) + list(extra_rd), list(extra_wr))
def bstore(f, s, voff, srd, soff, off, flags, extra_rd=()):
    o = f" offset:{off}" if off else ""
    fl = f" {flags}" if flags else ""
    return Op(f"buffer_store_dwordx4 {R(f, s, 4)}, {voff}, s[{srd}:{srd+3}], {soff} offen{o}{fl}", "vmem",
              [voff] + _opr(soff) + regs(f, s, 4) + list(extra_rd), [], stdata=regs(f, s, 4))
def wait(lds=None, vm=None, lgkm0=False, vm0=False, extra_rd=(), extra_wr=()):
    rg = []
    for o in (lds or []): rg += o.wr if o.isload else []
    op = Op("", "wait", rg + list(extra_rd), rg + list(extra_wr))
    op.covers = lds; op.vmcovers = vm; op.lgkm0 = lgkm0; op.vm0 = vm0
    return op
def barrier(rd=(), wr=()): return Op("s_barrier", "bar", rd, wr)
def branch(text, rd=(), wr=()): return Op(text, "branch", rd, wr)
def label(name): return Op(f"{name}:", "label")
def nop(n):
    o = Op(f"s_nop {n-1}", "nop"); o.states = n; return o
def raw(text, kind="salu", rd=(), wr=()): return Op(text, kind, rd, wr)

ISV = ("valu", "trans")
def is_vgpr(r): return r[0] in "va" and r[1:].isdigit()

def dist(p, c, reg, typ):
    if not is_vgpr(reg):
        if reg == "m0" and typ == "RAW" and p.kind == "salu" and c.kind == "vmem": return 1
        if typ == "RAW" and p.kind in ISV and reg[0] == "s" and c.kind == "vmem": return 5
        if typ == "RAW" and p.kind in ISV and (reg[0] == "s" or reg == "vcc") and c.kind in ISV: return 2
        if typ == "RAW" and p.kind in ISV and reg == "vcc" and c.kind == "branch": return 1
        return 0
    if c.kind in ("wait", "branch", "bar") or p.kind in ("wait", "branch", "bar"): return 0
    if typ == "RAW":
        if p.kind == "mfma":
            if c.kind == "mfma":
                if reg in c.srcC and c.srcC == p.wr and reg not in c.rd[:8]: return 0
                if reg in c.rd[:8]: return 8
                return 6
            return 8
        if p.kind in ISV:
            if c.kind == "mfma": return 2
            if c.perm: return 2
            if "readfirstlane" in c.text or "readlane" in c.text: return 1
            if p.kind == "trans" and c.kind == "valu": return 1
        return 0
    if typ == "WAW":
        if p.kind == "mfma" and c.kind != "mfma": return 8
        return 0
    if typ == "WAR":
        if p.kind == "mfma" and reg in p.srcC and c.kind in ISV: return 3
        if reg in p.stdata: return 2
        return 0

PSEUDO = ("wait", "branch", "bar")
def build_deps(ops):
    lastw, readers, lastp = {}, {}, {}
    for o in ops:
        P = {}
        def add(p, reg, typ):
            if p is o: return
            d = dist(p, o, reg, typ)
            P[id(p)] = (p, max(d, P.get(id(p), (p, 0))[1]))
        for r in o.rd:
            if r in lastw: add(lastw[r], r, "RAW")
            if r in lastp: add(lastp[r], r, "RAW")
        for r in o.wr:
            if r in lastw: add(lastw[r], r, "WAW")
            if r in lastp: add(lastp[r], r, "WAW")
            for q in readers.get(r, []): add(q, r, "WAR")
        if o.kind == "wait":
            for c in (o.covers or []) + (o.vmcovers or []):
                if c.pos == "seg": P[id(c)] = (c, 0)
        o.preds = list(P.values())
        for r in o.rd: readers.setdefault(r, []).append(o)
        for r in o.wr:
            if o.kind in PSEUDO: lastp[r] = o
            else:
                lastw[r] = o; readers[r] = []

def cls(o):
    if o.kind in ISV: return "v"
    if o.kind in ("lds", "vmem"): return "m"
    return "s"
def is_dsw(o): return o.kind == "lds" and bool(o.stdata)
def is_store(o): return o.kind == "vmem" and bool(o.stdata)
def is_pk(o): return o.pk_at is not None or o.text.startswith("v_pk_")
SOFT_LDS = 18
QUIET = [0]
def soft(p, o): return SOFT_LDS if (o.kind == "wait" and p.kind == "lds" and o.covers and any(p is c for c in o.covers)) else 0
def macro(ops):
    rd, wr = [], []
    for o in ops:
        rd += [r for r in o.rd if r not in rd]; wr += [r for r in o.wr if r not in wr]
    m = Op("\n    ".join(o.text for o in ops), "valu", rd, wr)
    m.states = len(ops); m.cyc = sum(cost(o) for o in ops)
    acc = 0
    for o in ops:
        if o.text.startswith("v_pk_"):
            m.pk_at = acc; break
        acc += cost(o)
    return m
def eager(ops):
    for o in ops: o.eager = True
    return ops
def cost(o):
    if o.cyc is not None: return o.cyc
    if o.kind == "trans" or o.perm: return 8
    if o.kind == "valu": return 4
    if o.kind == "lds": return 4 + 4 * len(o.stdata)
    if o.kind == "vmem": return 4 if o.stdata else 8
    if o.kind == "branch": return 4
    return 0

def gap_cycles(items):
    t = 4
    minlen = 16
    sawv = False
    for o in items:
        c = cls(o)
        if c == "s":
            t += 4 * o.states + (4 if o.kind == "branch" else 0)
            if o.kind == "bar": t += 12
        else:
            t = max(t, 8)
            if c == "m":
                if sawv: t += 8
                sawv = False
                if is_store(o): minlen = max(minlen, t + 20)
            else:
                if is_pk(o): t = max(t, 28 - (o.pk_at or 0))
                sawv = True
            t += cost(o)
    return max(minlen, t)
def estimate(out):
    tot, cur, started = 0, [], False
    for o in out:
        if o.kind == "label": continue
        if o.kind == "mfma":
            tot += gap_cycles(cur) if started else max(0, gap_cycles(cur) - 8) * (1 if cur else 0)
            cur = []; started = True
        else: cur.append(o)
    tot += gap_cycles(cur)
    return tot

def schedule(ops, budget=None, tail=(), verbose=False, name="", lazy=()):
    if budget is None:
        best = None
        nm = max(1, sum(1 for o in ops if o.kind == "mfma"))
        dem = sum(cost(o) for o in ops if not o.eager) / nm
        base = max(8.0, dem)
        for f in (0, 0.1, 0.25, 0.5, 1.0, 2.0):
            r = _schedule(ops, base + f, tail, lazy)
            e = estimate(r)
            if best is None or e < best[0]: best = (e, base + f)
        budget = best[1]
    out = _schedule(ops, budget, tail, lazy)
    if verbose:
        nm = sum(1 for o in out if o.kind == "mfma")
        print(f"  sched {name}: {nm} mfma, {len(out)} instrs, budget {budget:.2f}, port {sum(cost(o) for o in out) + 8*nm}, est {estimate(out)} cyc, nops {sum(o.states for o in out if o.kind=='nop')}")
    return out

def _schedule(ops, budget, tail=(), lazy=()):
    for o in list(ops) + list(tail): o.pos = "seg"
    build_deps(list(ops) + list(tail))
    mf = [o for o in ops if o.kind == "mfma"]
    N = len(mf)
    mpos = {id(o): i for i, o in enumerate(mf)}
    succ = {id(o): [] for o in list(ops) + list(tail)}
    for o in list(ops) + list(tail):
        for p, d in o.preds: succ[id(p)].append((o, d))
    tailset = set(id(o) for o in tail)
    rank = {"s": 0, "m": 1, "v": 2}
    for o in reversed(ops):
        if o.kind == "mfma": continue
        dl = N - 1 if o.hi is None else min(o.hi, N - 1)
        for s_, d in succ[id(o)]:
            if id(s_) in tailset: continue
            if s_.kind == "mfma": dl = min(dl, mpos[id(s_)] - 1 - (1 if d > 0 else 0))
            else:
                lag = 1 if (d > 0 or cost(o) + cost(s_) > 8 or rank[cls(s_)] < rank[cls(o)] or cls(s_) == "s") else 0
                if soft(o, s_): lag = SOFT_LDS // 3 + 1
                dl = min(dl, s_.dl - lag)
        o.dl = dl
    est0 = {}
    for o in ops:
        if o.kind == "mfma": est0[id(o)] = mpos[id(o)]; continue
        e = -1 if o.lo is None else o.lo
        for p, d in o.preds: e = max(e, est0[id(p)])
        est0[id(o)] = e
    out = []
    at = {}
    clock = [0]
    pend = [o for o in ops if o.kind != "mfma"]
    def emit(o):
        for p, d in o.preds:
            if id(p) not in at:
                assert p.kind != "mfma", f"order violation: {o.text} needs future mfma {p.text}"
                emit(p)
        need = 0
        for p, d in o.preds: need = max(need, d - (clock[0] - at[id(p)] - 1))
        if need > 0:
            out.append(nop(need)); clock[0] += need
        at[id(o)] = clock[0] + (o.states - 1 if o.kind == 'valu' else 0); clock[0] += o.states
        out.append(o)
        for i, x in enumerate(pend):
            if x is o: del pend[i]; break
    order = {id(o): i for i, o in enumerate(ops)}
    key = lambda o: (o.dl - o.prio, order[id(o)])
    pool = 0.0
    lastg = {}
    for g in range(-1, N):
        if g < 0:
            for o in sorted([o for o in pend if o.dl < 0], key=lambda o: order[id(o)]):
                if id(o) not in at: emit(o)
            continue
        emit(mf[g])
        pool += budget - 8
        picks = {"s": [], "m": [], "v": []}
        picked = {}
        def seq(): return picks["s"] + picks["m"] + picks["v"]
        def vslot(o):
            v = picks["v"]
            k = next((i for i, x in enumerate(v) if is_pk(x)), None)
            if k is None or is_pk(o): return len(v)
            after = set(id(x) for x in v[k:])
            if any(id(p) in after for p, _ in o.preds): return len(v)
            return k
        def ready(o):
            if id(o) in picked: return False
            if o.lo is not None and g < o.lo: return False
            c = cls(o)
            if o.dl > g:
                if o.space and g - lastg.get(o.space[0], -99) < o.space[1]: return False
                if o.kind == "lds" and 0 < g - lastg.get("w", -99) <= QUIET[0]: return False
                if c == "m" and picks["m"] and (is_dsw(o) or any(is_dsw(x) for x in picks["m"])): return False
            pos = clock[0] + len(picks["s"]) + (len(picks["m"]) if c != "s" else 0) + (sum(x.states for x in picks["v"][:vslot(o)]) if c == "v" else 0)
            for p, d in o.preds:
                d = max(d, soft(p, o)) if o.dl > g else d
                if id(p) in at:
                    if pos - at[id(p)] - 1 < d: return False
                elif id(p) in picked:
                    if rank[cls(p)] > rank[c]: return False
                    sq = seq(); ip = 0
                    for x in sq:
                        ip += x.states
                        if x is p: break
                    if pos - (clock[0] + ip - 1) - 1 < d: return False
                else: return False
            return True
        def take(o):
            c = cls(o)
            if c == "v": picks[c].insert(vslot(o), o)
            else: picks[c].append(o)
            picked[id(o)] = 1
        def untake(o):
            picks[cls(o)] = [x for x in picks[cls(o)] if x is not o]; del picked[id(o)]
        def length(extra=None):
            if extra is None: return gap_cycles(seq())
            take(extra); r = gap_cycles(seq()); untake(extra); return r
        live = [o for o in pend if est0[id(o)] <= g]
        limit = 16 + max(0.0, pool)
        extra = 0
        while True:
            cand = sorted([o for o in live if ready(o)], key=key)
            if not cand: break
            forced = [o for o in cand if o.dl <= g]
            if forced:
                o = forced[0]; take(o)
                if o.eager: extra += cost(o)
                continue
            eg = [o for o in cand if o.eager and cls(o) != "s" and not (cls(o) == "m" and any(x.eager for x in picks["m"]))
                  and not (cls(o) == "m" and len(picks["m"]) >= 2)]
            if eg:
                take(eg[0]); extra += cost(eg[0]); continue
            cand = [o for o in cand if not (o.eager and cls(o) != "s")]
            if g in lazy: cand = [o for o in cand if cls(o) != "v"]
            cur = length()
            lim = max(limit + extra, cur)
            if not picks["s"]:
                z = [o for o in cand if cls(o) == "s" and length(o) <= lim]
                if z: take(z[0]); continue
            fit = [o for o in cand if cls(o) != "s" and length(o) <= lim and not (cls(o) == "m" and len(picks["m"]) >= 2)]
            if fit:
                o = fit[0]
                if cost(o) == 4 and limit < 20 and not any(not x.eager for x in picks["m"] + picks["v"]):
                    take(o)
                    more = [x for x in live if ready(x) and cls(x) != "s" and not x.eager and length(x) <= lim and not (cls(x) == "m" and len(picks["m"]) >= 2)]
                    if not more:
                        big = [x for x in fit if cost(x) == 8]
                        if big:
                            untake(o); take(big[0])
                    continue
                take(o); continue
            z = [o for o in cand if cls(o) == "s" and length(o) <= lim]
            if z: take(z[0]); continue
            break
        pool -= max(0, length() - 16 - extra)
        pool = max(pool, -16.0)
        for o in seq():
            if o.space: lastg[o.space[0]] = g
            if id(o) not in at: emit(o)
    for o in sorted(list(pend), key=lambda o: order[id(o)]):
        if id(o) not in at: emit(o)
    for o in tail: emit(o)
    for o in out: o.pos = None
    return out

def linear(ops):
    return _schedule([], 8.0, tail=ops)

def resolve_waits(trace):
    lds, vm = [], []
    for o in trace:
        if o.kind == "lds": lds.append(o)
        elif o.kind == "vmem": vm.append(o)
        elif o.kind == "wait":
            if o.lgkm0: o.lgkmN = 0
            elif o.covers:
                idx = max(i for i, x in enumerate(lds) if any(x is c for c in o.covers))
                assert all(any(x is c for x in lds) for c in o.covers)
                o.lgkmN = min(15, len(lds) - 1 - idx)
            if o.vm0: o.vmN = 0
            elif o.vmcovers:
                idx = max(i for i, x in enumerate(vm) if any(x is c for c in o.vmcovers))
                assert all(any(x is c for x in vm) for c in o.vmcovers), "vm cover not issued yet"
                o.vmN = min(63, len(vm) - 1 - idx)

def check_trace(trace):
    errs = []
    clock = 0
    lastw, readers = {}, {}
    out_lds, out_vm = [], []
    for o in trace:
        if o.kind == "label": continue
        if o.kind == "wait":
            if o.lgkmN is not None:
                while len(out_lds) > o.lgkmN: out_lds.pop(0)
            if o.vmN is not None:
                while len(out_vm) > o.vmN: out_vm.pop(0)
            clock += 1
            continue
        if o.kind in ("nop",):
            clock += o.states; continue
        if o.kind not in ("branch", "bar"):
            for q in out_lds + out_vm:
                if q.isload:
                    for r in q.wr:
                        if is_vgpr(r) and (r in o.rd or r in o.wr): errs.append(f"uncovered load: [{q.text}] -> [{o.text}] on {r}")
            def chk(p, t, r, typ):
                d = dist(p, o, r, typ)
                if clock - t - 1 < d: errs.append(f"hazard {typ} {r}: [{p.text}] -> [{o.text}] have {clock-t-1} need {d}")
            for r in o.rd:
                if r in lastw: chk(*lastw[r], r, "RAW")
            for r in o.wr:
                if r in lastw: chk(*lastw[r], r, "WAW")
                for p, t in readers.get(r, []): chk(p, t, r, "WAR")
            clock += o.states - 1
            for r in o.rd: readers.setdefault(r, []).append((o, clock))
            for r in o.wr:
                lastw[r] = (o, clock); readers[r] = []
            for r in list(readers):
                if len(readers[r]) > 6: readers[r] = readers[r][-6:]
        elif o.kind == "branch":
            for r in o.rd:
                if r == "vcc" and r in lastw:
                    p, t = lastw[r]
                    if clock - t - 1 < dist(p, o, r, "RAW"): errs.append("vcc->branch")
        if o.kind == "lds": out_lds.append(o)
        if o.kind == "vmem": out_vm.append(o)
        clock += 1
    return errs
```

```python
import sys, math, struct, subprocess, re, os
sys.path.insert(0, "gen")
from fw import *

class Cfg:
    ldflag = "nt"; stflag = "sc1"; st0flag = None; stlast = None; stamps = False; rt = False; echo = None; thr_log2 = 32
    verbose = True; force_slow = False; dma_step = 3; init_quads = 4; pf = True; hops = True; segstamps = False
    wmap = None; lazy = None; st_space = 4; tail_space = 6
    loads0 = {2: ["K6", "K7"], 3: ["K8", "K9"], 4: ["K10", "K11"], 5: ["Q0", "Q1"], 6: ["Q2", "Q3"], 7: ["Q4"], 8: ["Q5"], 9: ["K12"], 10: ["K13"], 11: ["K14"]}
    loads1 = {12: ["K15", "K16"], 13: ["K17"], 14: ["K18"], 15: ["K19"], 16: ["K20", "K21"], 17: ["K22"], 18: ["K23"]}
    drain = {11: 4, 12: 6, 13: 4, 14: 3, 15: 3, 16: 2, 17: 2}
cfg = Cfg()

NAME = "standalone__gqa_softmax__near_ridge_kernel"
GS = 1056; QT = 4 * GS; TILE = 8 * GS; PAIR = 2 * TILE; LDS_BYTES = 9 * PAIR
HEAD = 98304
KSLOT = [n % 9 for n in range(12)] + [0, 1, 2, 0, 3, 1, 2, 0, 3, 4, 1, 2]
PRIV = {16: 0, 21: 1}
OSLOT = [[3, 4, 5, 6, 7, 8], [5, 6, 7, 8, 0, 5]]
def O(t, db): return ("v", 32 * t + 4 * db)
def S(p, i=0): return 192 + 8 * (p % 2) + i
def P(p, i=0): return 208 + 4 * (p % 2) + i
def LA(t): return 216 + 4 * t
def NEGM(t): return f"v{240 + t}"
vK, vV, vLin, vQ, vOw, vOr = "v246", "v247", "v248", "v249", "v250", "v251"
TMP = 252
def Q(t, s): return ("a", 16 * t + 4 * s)
def K(par, kb, s): return ("a", 96 + 32 * par + 16 * kb + 4 * s)
def V(par, db): return ("a", 160 + 32 * par + 4 * db)
ONES = ("a", 224); STG = 228
SQ, SKV, SV2, SO = 4, 8, 12, 16
sW, sC, sTHR, sCNT, sKV, sOG, sWQ, sQG, sNC = "s20 s21 s22 s23 s24 s25 s27 s28 s35".split()
FLAG = (76, 78)
NSUB = 144
C_SCALE = (128 ** -0.5) * math.log2(math.e)
def f2u(x): return struct.unpack("<I", struct.pack("<f", x))[0]

ORDER = [divmod(p, 6) for p in range(NSUB)]
ORDER[:12] = [(0, 0), (0, 1), (1, 0), (1, 1), (0, 2), (1, 2), (0, 3), (1, 3), (0, 4), (1, 4), (0, 5), (1, 5)]
ORDER[120:] = [(J, t) for J in (20, 21, 22, 23) for t in (0, 1, 2)] + [(J, t) for J in (20, 21) for t in (3, 4, 5)] + \
              [(22, 3), (23, 3), (22, 4), (23, 4), (22, 5), (23, 5)]
def JT(p): return ORDER[p]

def QKt(p, t, par):
    ops = []
    for kb in range(2):
        for s in range(4):
            D = ("v", S(p, 4 * kb))
            ops.append(mfma16(D, K(par, kb, s), Q(t, s), None if s == 0 else D))
    return ops
def PVt(p, t, par, first):
    la = ("v", LA(t))
    return [mfma16(la, ONES, ("v", P(p)), None if first else la)] + \
           [mfma16(O(t, db), V(par, db), ("v", P(p)), None if first else O(t, db)) for db in range(8)]
def QK(p): J, t = JT(p); return QKt(p, t, J % 2)
def PV(p): J, t = JT(p); return PVt(p, t, J % 2, J % 12 == 0)
def colmax(x, a, b):
    return [valu("v_max3_f32", a, x[0], x[1], x[2]), valu("v_max3_f32", a, a, x[3], x[4]), valu("v_max3_f32", a, a, x[5], x[6]),
            valu("v_max_f32", b, a, x[7]), valu("v_max_f32", a, a, x[7]), perm("v_permlane16_swap_b32", a, b),
            valu("v_max_f32", a, a, b), valu("v_mov_b32", b, a), perm("v_permlane32_swap_b32", a, b), valu("v_max_f32", a, a, b)]
def SM(p):
    J, t = JT(p)
    ops = []
    x = [f"v{S(p, i)}" for i in range(8)]
    if J % 12 == 0:
        a, b = f"v{TMP + 2 * (p % 2)}", f"v{TMP + 1 + 2 * (p % 2)}"
        ops += eager(colmax(x, a, b) + [valu("v_mul_f32", NEGM(t), sNC, a)])
    for i in range(0, 8, 2):
        for k in (i, i + 1): ops.append(valu("v_fma_f32", x[k], x[k], sC, NEGM(t)))
        for k in (i, i + 1): ops.append(trans("v_exp_f32", x[k], x[k]))
        ops.append(valu("v_cvt_pk_bf16_f32", f"v{P(p, i // 2)}", x[i], x[i + 1]))
    return ops
bias = {}
def window(reg, slot, hint=None):
    ops = []
    if not (0 <= slot - bias[reg] <= 3):
        want = hint if hint is not None else (0 if slot <= 3 else min(slot, 5))
        assert 0 <= slot - want <= 3
        d = (want - bias[reg]) * PAIR
        ops.append(valu("v_add_u32", reg, d, reg) if d > 0 else valu("v_subrev_u32", reg, -d, reg))
        bias[reg] = want
    return eager(ops), (slot - bias[reg]) * PAIR
def khint(n): return 1 if n >= 20 else None
def rdK(n, bar="bar"):
    w, b = window(vK, KSLOT[n], khint(n))
    return w, [ds_read("ds_read_b128", *K(n % 2, kb, s), 4, vK, b + kb * 512 + s * 64, extra_rd=[bar]) for kb in range(2) for s in range(4)]
def rdV(n, bar="bar"):
    w, b = window(vV, KSLOT[n], khint(n))
    return w, [ds_read("ds_read_b64_tr_b16", "a", V(n % 2, db)[1] + 2 * kb, 2, vV, b + TILE + kb * 512 + db * 32, extra_rd=[bar]) for db in range(8) for kb in range(2)]
def rdQ(t):
    w, b = window(vQ, 3 + t, 3 if t < 3 else 5)
    r = [ds_read("ds_read_b128", *Q(t, s), 4, vQ, b + s * 64, extra_rd=[f"qok{t}", f"stg{3+t}"]) for s in range(4)]
    for o in r: o.space = ("q", 2)
    return w, r
kv_dma, q_dma = {}, {}
def quad(srd, soff, slot, rec, need=("bar",)):
    ops = []
    for i in range(4):
        c = slot * PAIR + 32 * i
        ops.append(salu("s_add_u32", "m0", sWQ, c) if c else salu("s_mov_b32", "m0", sWQ, scc_wr=False))
        d = dma(vLin, srd, soff, 1024 * i, cfg.ldflag, extra_rd=list(need))
        rec.append(d); ops.append(d)
    return ops
def quadKV(n):
    assert n == len(kv_dma)
    need = [f"drained{PRIV[n]}"] if n in PRIV else ["bar"]
    return quad(SKV, sKV, KSLOT[n], kv_dma.setdefault(n, []), need) + [salu("s_add_u32", sKV, sKV, 8192)]
def quadQ(h, t):
    return quad(SQ, sQG, 3 + t, q_dma.setdefault((h, t), [])) + [salu("s_add_u32", sQG, sQG, 4096 if t < 5 else HEAD - 5 * 4096)]
def EPI(t, h, check=True):
    l, r = LA(t), LA(t) + 2
    m = [trans("v_rcp_f32", f"v{r}", f"v{l}"), valu("v_cmp_ngt_f32", "vcc", sTHR, f"v{l}")]
    for i in range(0, 32, 2):
        b = 32 * t + i
        m.append(Op(f"v_pk_mul_f32 v[{b}:{b+1}], v[{b}:{b+1}], v[{r}:{r+1}] op_sel_hi:[1,0]", "valu", vr(b, 2), vr(b, 2)))
    for db in range(8):
        b = O(t, db)[1]
        m.append(valu("v_cvt_pk_bf16_f32", f"v{b}", f"v{b}", f"v{b+1}"))
        m.append(valu("v_cvt_pk_bf16_f32", f"v{b+1}", f"v{b+2}", f"v{b+3}"))
    ops = [macro(m)]
    if check:
        f = FLAG[h]
        ops.append(Op(f"s_or_b64 s[{f}:{f+1}], s[{f}:{f+1}], vcc", "salu", ["vcc", f"s{f}"], [f"s{f}", "scc"]).w(prio=50))
    sl = OSLOT[h][t]
    w, base = window(vOw, sl, 3 if sl == 3 else None)
    ops += w
    for db in range(8):
        o = ds_write("ds_write_b64", vOw, "v", O(t, db)[1], 2, base + db * 32,
                     extra_wr=[f"stg{sl}"] if db == 0 else [], extra_rd=[f"stg{sl}"] if db else [])
        o.wr.append(f"ost{t}_{db}"); ops.append(o)
    return eager(ops)
def ost(t): return [f"ost{t}_{db}" for db in range(8)]
def STORE(h, G0, quads, lo=None, space=None, flag=None):
    rds, pre, done = [], [], []
    for i, a in enumerate(quads):
        t, G = divmod(G0 + i, 4)
        sl = OSLOT[h][t]
        w, b = window(vOr, sl, 3 if sl == 3 else None)
        rd = ds_read("ds_read_b128", "a", a, 4, vOr, b + G * GS, extra_rd=ost(t) + [f"stg{sl}"])
        rd.lo = lo
        rds.append(rd); pre += w + [rd]
        if G == 3: done.append(f"drained{t}")
    st = [wait(lds=rds, extra_wr=done)]
    fl = flag if flag is not None else (cfg.st0flag if (h == 0 and cfg.st0flag is not None) else cfg.stflag)
    for i, a in enumerate(quads):
        st.append(bstore("a", a, vLin, SO, sOG, 1024 * i, fl)); st[-1].space = ("st", space or cfg.st_space)
    last = G0 + len(quads) == 24
    st.append(salu("s_add_u32", sOG, sOG, 1024 * len(quads) + (HEAD - 24576 if last else 0)))
    return pre, st
def stamp(i):
    return [raw(f"{'s_memrealtime' if cfg.rt else 's_memtime'} s[{40+2*i}:{41+2*i}]", "salu")] if cfg.stamps else []

def nmf(ops): return sum(1 for o in ops if o.kind == "mfma")
def insert_wait(ops, w, after=None):
    rs = set(w.wr)
    k = -1 if after is None else next(i for i, o in enumerate(ops) if o is after)
    for i in range(k + 1, len(ops)):
        if ops[i].kind == "mfma" and rs & set(ops[i].rd):
            w.lo = nmf(ops[:i]) - 3
            ops.insert(i, w); return
    raise AssertionError
def pace(ops, g0, step, lo=None):
    k = 0
    for o in ops:
        if lo is not None: o.lo = lo
        if o.kind == "vmem":
            k += 1; o.hi = g0 + step * k
state = {}
def finish(ops, tail, J, name):
    lazy = set()
    if cfg.lazy and cfg.lazy.get(J):
        n = cfg.lazy[J]
        for k in range(n):
            s0 = 17 * ((k * 6) // n)
            lazy |= set(range(s0, s0 + 17))
    r = schedule(ops, tail=tail, verbose=cfg.verbose, name=name, lazy=lazy)
    waste = (cfg.wmap or {}).get(J, 0) // 8
    if waste:
        out, k = [], 0
        for o in r:
            if o.kind == "mfma":
                k += 1
                if (k * waste) // 102 != ((k - 1) * waste) // 102: out.append(nop(2))
            out.append(o)
        r = out
    return r
def drain_ops(J, lo0):
    n = cfg.drain.get(J, 0)
    ops = []
    k = 0
    while n:
        c = min(n, 3 if n > 4 else 4)
        qs = [STG + 4 * ((state["stq"] + i) % 7) for i in range(c)]; state["stq"] += c
        pre, st = STORE(0, state["G"], qs, lo=lo0 + 30 * k)
        state["G"] += c; n -= c; k += 1
        ops += eager(pre + st)
    return ops
def segment(J):
    u0, u1 = 6 * J + 1, 6 * J + 7
    head = [barrier(rd=["prebar"], wr=["bar"]).w(hi=0)]
    late = []
    st = 2 * cfg.dma_step
    lds = {**cfg.loads0, **cfg.loads1}.get(J, [])
    for k, name in enumerate(lds):
        n = int(name[1:])
        q = quadKV(n) if name[0] == "K" else quadQ(1, n)
        g0 = (92 // len(lds)) * k
        pace(q, 2 + g0, st, lo=g0 - 2 if k else None)
        if name[0] == "K" and n in PRIV: late += q
        else: head += q
    wk, kr = rdK(J + 1); wv, vrd = rdV(J + 1)
    for i, o in enumerate(kr): o.hi = 18 + 5 * i
    for i, o in enumerate(vrd): o.hi = 46 + 3 * i
    head += wk + kr + wv + vrd
    qr = {}
    hook = lambda u: []
    if J == 11:
        wqs = wait(vm=[d for t in range(6) for d in q_dma[(1, t)]], extra_wr=[f"qok{t}" for t in range(6)])
        head.append(wqs)
        def hook(u):
            o = []
            t = u - 65
            for t in ([0, 1, 2] if u == 67 else ([t] if 3 <= t <= 5 else [])):
                w, qr[t] = rdQ(t); o += w + eager(qr[t])
            t = u - 67
            if 0 <= t <= 3: o += EPI(t, 0)
            return o
    if J == 12: head += EPI(4, 0) + EPI(5, 0)
    body = []
    for u in range(u0, u1): body += QK(u + 1) + SM(u) + PV(u - 1) + hook(u)
    if J == 11:
        for t in (0, 1): insert_wait(body, wait(lds=qr[t]), qr[t][-1])
        for t in range(2, 6):
            for o in qr[t]: o.hi = 94
    insert_wait(body, wait(lds=kr))
    nm = nmf(body)
    w = wait(lds=kr + vrd + [o for t in qr for o in qr[t]], vm=kv_dma[J + 2], extra_wr=["prebar"]).w(lo=nm - 1)
    ops = head + body + drain_ops(J, {11: 50, 12: 30}.get(J, 10)) + late + [w]
    return finish(ops, [], J, f"seg{J}")

def tailseg():
    ops = [barrier(rd=["prebar"], wr=["bar"]).w(hi=0)]
    lastQK, lastPV, firstuse = {}, {}, {}
    visits = [(21, 123, 119), (22, 126, 122), (23, 129, 125), (20, 132, 128), (21, 135, 131), (22, 138, 134), (23, 139, 137)]
    kafter = {prev: (n, first) for n, first, prev in visits}
    pend = []
    tq = {}
    def reads(kind, n, bar):
        w, r = (rdK if kind == "K" else rdV)(n, bar)
        pend.append(r); return w + r
    ops += reads("K", 21, "bar") + reads("V", 21, "bar")
    G = 0
    for u in range(121, 145):
        if u + 1 < NSUB:
            ops += QK(u + 1)
            if u + 1 == 122:
                ops += [wait(vm=kv_dma[22] + kv_dma[23], extra_wr=["prebar2"]).w(lo=nmf(ops) + 8), barrier(rd=["prebar2"], wr=["bar2"])]
            if u + 1 in kafter: ops += reads("K", kafter[u + 1][0], "bar2")
        if u < NSUB: ops += SM(u)
        ops += PV(u - 1)
        if u - 1 in kafter and u - 1 > 119: ops += reads("V", kafter[u - 1][0], "bar2")
        Jp, t = JT(u - 1)
        if Jp == 23 and t < 5:
            pre, st = STORE(1, 4 * t, [16 * t + 4 * i for i in range(4)], space=cfg.tail_space if t < 3 else cfg.st_space)
            ops += EPI(t, 1) + eager(pre + st)
    for r in pend: insert_wait(ops, wait(lds=r), r[-1])
    tail = EPI(5, 1)
    pre, st = STORE(1, 20, [80 + 4 * i for i in range(4)], flag=cfg.stlast)
    tail += pre + st[:-1]
    return finish(ops, tail, 20, "tail")

def lane_addrs(B, t):
    B(valu("v_and_b32", t[4], 7, t[2])); B(valu("v_lshrrev_b32", t[5], 3, t[2]))
    B(valu("v_mul_u32_u24", vK, GS, t[4])); B(valu("v_lshl_add_u32", vK, t[5], 8, vK)); B(valu("v_lshl_add_u32", vK, t[3], 4, vK))
    B(valu("v_and_b32", t[4], 1, t[3])); B(valu("v_lshrrev_b32", t[5], 2, t[2])); B(valu("v_lshl_add_u32", t[4], t[4], 2, t[5]))
    B(valu("v_mul_u32_u24", vV, GS, t[4])); B(valu("v_lshrrev_b32", t[4], 1, t[3])); B(valu("v_lshl_add_u32", vV, t[4], 8, vV))
    B(valu("v_lshlrev_b32", vQ, 8, t[5]))
    B(valu("v_xor_b32", t[4], t[4], t[5])); B(valu("v_and_b32", t[4], 1, t[4]))
    B(valu("v_and_b32", t[5], 3, t[2])); B(valu("v_lshl_add_u32", vV, t[5], 3, vV))
    B(salu("s_add_u32", "s84", sWQ, 3 * PAIR))
    B(valu("v_mul_u32_u24", t[5], GS, t[5])); B(valu("v_add3_u32", vQ, vQ, t[5], "s84"))
    B(valu("v_lshl_add_u32", vOw, t[4], 4, vQ))
    B(valu("v_and_b32", t[4], 1, t[3])); B(valu("v_lshl_add_u32", vOw, t[4], 3, vOw))
    B(valu("v_lshl_add_u32", vQ, t[3], 4, vQ))
    B(valu("v_lshlrev_b32", t[4], 4, t[4])); B(valu("v_xor_b32", vOr, t[4], vLin)); B(valu("v_add_u32", vOr, "s84", vOr))
    for r in (vQ, vOw, vOr): bias[r] = 3
    for r in (vK, vV): bias[r] = 0

def setup():
    o = []
    A = o.append
    A(raw("s_cmp_ge_u32 s2, 256")); A(raw("s_cbranch_scc1 Lend"))
    o += stamp(0)
    A(raw("s_load_dwordx4 s[36:39], s[0:1], 0")); A(raw("s_load_dwordx4 s[64:67], s[0:1], 16"))
    if cfg.stamps and not cfg.echo: A(raw("s_load_dwordx2 s[68:69], s[0:1], 40"))
    t = [f"v{i}" for i in range(1, 7)]
    A(valu("v_lshrrev_b32", t[0], 6, "v0"))
    A(valu("v_and_b32", t[1], 63, "v0"))
    A(valu("v_readfirstlane_b32", sW, t[0]))
    A(valu("v_lshlrev_b32", vLin, 4, t[1]))
    A(valu("v_and_b32", t[2], 15, t[1]))
    A(valu("v_lshrrev_b32", t[3], 4, t[1]))
    if cfg.pf:
        A(raw("s_getpc_b64 s[70:71]\nLpc:", wr=["s70", "s71"]))
        A(raw("s_add_u32 s70, s70, Lmain-Lpc")); A(raw("s_addc_u32 s71, s71, 0"))
        A(salu("s_lshr_b32", "s72", "s2", 1)); A(salu("s_and_b32", "s72", "s72", 60)); A(salu("s_add_u32", "s72", "s72", sW))
        A(raw("s_min_u32 s72, s72, (Lend-Lmain)>>10"))
        A(salu("s_lshl_b32", "s72", "s72", 10))
        A(valu("v_add_u32", t[4], "s72", vLin))
        A(Op(f"global_load_dwordx4 a[{STG}:{STG+3}], {t[4]}, s[70:71]", "vmem", [t[4]], []))
    A(salu("s_mul_i32", sWQ, sW, QT, scc_wr=False))
    A(salu("s_mul_i32", sQG, sW, 24576, scc_wr=False))
    A(salu("s_and_b32", sKV, sW, 1)); A(salu("s_lshl_b32", sKV, sKV, 12))
    A(salu("s_mul_i32", "s73", "s2", 2 * HEAD, scc_wr=False))
    for srd in (SKV, SQ, SV2, SO):
        A(salu("s_mov_b32", f"s{srd+2}", 2 * HEAD, scc_wr=False)); A(salu("s_mov_b32", f"s{srd+3}", "0x20000", scc_wr=False))
    A(salu("s_mov_b32", sOG, sQG, scc_wr=False))
    A(scmp("s_cmp_lt_u32", sW, 2))
    A(raw("s_waitcnt lgkmcnt(0)"))
    A(raw(f"s_cselect_b64 s[{SKV}:{SKV+1}], s[38:39], s[64:65]"))
    for srd, p in ((SKV, SKV), (SQ, 36), (SO, 66), (SV2, 64)):
        A(salu("s_add_u32", f"s{srd}", f"s{p}", "s73")); A(salu("s_addc_u32", f"s{srd+1}", f"s{p+1}", 0, scc_rd=True))
    late = []
    B = late.append
    lane_addrs(B, t)
    B(salu("s_mov_b32", sC, hex(f2u(C_SCALE)), scc_wr=False)); B(salu("s_mov_b32", sNC, hex(f2u(-C_SCALE)), scc_wr=False))
    B(salu("s_mov_b32", sTHR, hex(f2u(0.0 if cfg.force_slow else 2.0 ** cfg.thr_log2)), scc_wr=False))
    B(raw(f"s_mov_b64 s[{FLAG[0]}:{FLAG[0]+1}], 0")); B(raw(f"s_mov_b64 s[{FLAG[1]}:{FLAG[1]+1}], 0"))
    B(valu("v_mov_b32", t[0], "0x3f803f80"))
    for i in range(4): B(valu("v_accvgpr_write_b32", f"a{ONES[1]+i}", t[0]))
    return o, late

def first():
    loads = [lambda: quadKV(0), lambda: quadQ(0, 0), lambda: quadQ(0, 1), lambda: quadKV(1), lambda: quadQ(0, 2), lambda: quadQ(0, 3),
             lambda: quadQ(0, 4), lambda: quadQ(0, 5), lambda: quadKV(2), lambda: quadKV(3), lambda: quadKV(4)]
    def nxt(n=1):
        o = []
        for _ in range(n):
            if loads: o += loads.pop(0)()
        return o
    wq = lambda t: wait(vm=q_dma[(0, t)], extra_wr=[f"qok{t}"])
    s0, late = setup()
    entry = linear(s0 + nxt(cfg.init_quads) + late + stamp(1))
    o = [wait(vm=kv_dma[0]), barrier()]
    o += rdK(0)[1] + rdV(0)[1]
    w, q = rdQ(0)
    o += [wq(0)] + stamp(2) + w + q + nxt() + [wait(lds=q)]
    out = linear(o)
    def group(ps, tail, name):
        g = []
        for p in ps: g += QK(p)
        for p in ps: g += SM(p)
        for p in ps: g += PV(p)
        return schedule(g, tail=tail, verbose=cfg.verbose, name=name)
    def qtail(t):
        w, q = rdQ(t)
        return [wq(t)] + w + q + nxt() + [wait(lds=q)]
    out += group([0], qtail(1), "g0")
    out += group([1], [wait(vm=kv_dma[1]), barrier()] + rdK(1)[1] + rdV(1)[1] + nxt() + [wait(lgkm0=True)], "g1")
    out += group([2, 3], qtail(2), "g2") + stamp(3)
    out += group([4, 5], qtail(3), "g3")
    out += group([6, 7], qtail(4), "g4")
    out += group([8, 9], qtail(5), "g5") + stamp(4)
    rest = nxt(9)
    k2, v2 = rdK(2)[1], rdV(2)[1]
    wb = wait(vm=kv_dma[2], extra_wr=["prebar"]).w(lo=6)
    bar = barrier(rd=["prebar"], wr=["bar"]).w(hi=8)
    g = rest + QK(10) + [wb, bar] + eager(k2) + QK(11) + SM(10) + PV(10) + eager(v2) + [wait(lds=k2)] + QK(12) + SM(11) + QK(13) + SM(12) + PV(11) + quadKV(5)
    g += [wait(lds=v2, vm=kv_dma[3], extra_wr=["prebar"]).w(lo=nmf(g) - 1)]
    out += schedule(g, verbose=cfg.verbose, name="g6")
    return entry, out

def slow():
    o = []
    A = o.append
    A(label("Lslow"))
    A(raw("s_waitcnt vmcnt(0) lgkmcnt(0)"))
    t = [f"v{i}" for i in range(1, 7)]
    A(valu("v_lshrrev_b32", t[1], 4, vLin)); A(valu("v_and_b32", t[2], 15, t[1])); A(valu("v_lshrrev_b32", t[3], 4, t[1]))
    lane_addrs(A, t)
    A(salu("s_add_u32", "s84", sWQ, 5 * PAIR))
    A(valu("v_bfe_u32", t[4], t[2], 2, 1)); A(valu("v_mul_u32_u24", t[4], PAIR - QT, t[4])); A(valu("v_add3_u32", vK, t[4], vK, "s84"))
    A(valu("v_and_b32", t[4], 1, t[3])); A(valu("v_mul_u32_u24", t[4], PAIR - QT, t[4])); A(valu("v_add3_u32", vV, t[4], vV, "s84"))
    A(salu("s_mul_i32", sOG, sW, 24576, scc_wr=False)); A(salu("s_add_u32", sOG, sOG, "s81"))
    A(salu("s_add_u32", f"s{SKV}", "s38", "s73")); A(salu("s_addc_u32", f"s{SKV+1}", "s39", 0, scc_rd=True))
    def q4(srd, soff, slot):
        o.extend(quad(srd, soff, slot, [])); A(salu("s_add_u32", soff, soff, 4096))
    A(salu("s_mov_b32", "s82", sOG, scc_wr=False))
    for tt in range(6):
        q4(SQ, "s82", 5)
        A(raw("s_waitcnt vmcnt(0)"))
        o.extend([ds_read("ds_read_b128", *Q(tt, s), 4, vQ, 2 * PAIR + s * 64) for s in range(4)])
        A(wait(lgkm0=True))
    for i in range(192): A(valu("v_mov_b32", f"v{i}", 0))
    for i in range(24): A(valu("v_mov_b32", f"v{LA(0)+i}", 0))
    for tt in range(6): A(valu("v_mov_b32", NEGM(tt), "0xff800000"))
    A(salu("s_mov_b32", "s82", "s81", scc_wr=False)); A(salu("s_mov_b32", "s83", "s81", scc_wr=False))
    A(salu("s_mov_b32", sCNT, 12, scc_wr=False))
    A(label("Lslowloop"))
    q4(SKV, "s82", 5); q4(SKV, "s82", 6); q4(SV2, "s83", 7); q4(SV2, "s83", 8)
    A(raw("s_waitcnt vmcnt(0)"))
    o.extend([ds_read("ds_read_b128", *K(0, kb, s), 4, vK, kb * 512 + s * 64) for kb in range(2) for s in range(4)])
    o.extend([ds_read("ds_read_b64_tr_b16", "a", V(0, db)[1] + 2 * kb, 2, vV, 2 * PAIR + kb * 512 + db * 32) for db in range(8) for kb in range(2)])
    A(wait(lgkm0=True))
    t0, t1 = f"v{TMP}", f"v{TMP+1}"
    for tt in range(6):
        o.extend(QKt(tt, tt, 0))
        x = [f"v{S(tt, i)}" for i in range(8)]
        o.extend(colmax(x, t0, t1))
        A(valu("v_max_f32", t0, t0, NEGM(tt)))
        A(valu("v_sub_f32", t1, NEGM(tt), t0))
        A(valu("v_mul_f32", t1, sC, t1))
        A(trans("v_exp_f32", t1, t1))
        A(valu("v_mov_b32", NEGM(tt), t0))
        A(valu("v_mul_f32", t0, sNC, t0))
        for i in range(8): A(valu("v_fma_f32", x[i], x[i], sC, t0))
        for i in range(8): A(trans("v_exp_f32", x[i], x[i]))
        for i in range(4): A(valu("v_cvt_pk_bf16_f32", f"v{P(tt, i)}", x[2 * i], x[2 * i + 1]))
        for i in range(32): A(valu("v_mul_f32", f"v{32*tt+i}", f"v{32*tt+i}", t1))
        for i in range(4): A(valu("v_mul_f32", f"v{LA(tt)+i}", f"v{LA(tt)+i}", t1))
        o.extend(PVt(tt, tt, 0, False))
    A(nop(12))
    A(salu("s_sub_u32", sCNT, sCNT, 1)); A(scmp("s_cmp_lg_u32", sCNT, 0)); A(raw("s_cbranch_scc1 Lslowloop", "branch"))
    OSLOT.append([5, 6, 7, 8, 5, 6])
    for tt in range(6):
        o.extend(EPI(tt, 2, check=False))
        pre, st = STORE(2, 4 * tt, [STG + 4 * i for i in range(4)])
        o.extend(pre + st)
    OSLOT.pop()
    A(raw("s_waitcnt vmcnt(0) lgkmcnt(0)"))
    A(raw("s_setpc_b64 s[30:31]", "branch"))
    r = linear(o)
    resolve_waits(r)
    errs = check_trace(r)
    assert not errs, errs[:5]
    return r

def wrap(L_):
    hdr = open("standalone__gqa_softmax__near_ridge.s.ref").read().split("; Override launch")[0]
    src = hdr + f"; @launch grid=(256,1,1) block=(256,1,1) lds={LDS_BYTES}\n"
    src += f""".amdgcn_target "amdgcn-amd-amdhsa--gfx950"
.text
.globl {NAME}
.p2align 8
.type {NAME},@function
{NAME}:
"""
    if cfg.stamps or cfg.segstamps: src += "    s_memrealtime s[62:63]\n"
    src += "\n".join(L_) + "\n"
    src += f""".section .rodata,"a"
.p2align 6
.amdhsa_kernel {NAME}
  .amdhsa_next_free_vgpr 512
  .amdhsa_next_free_sgpr 102
  .amdhsa_accum_offset 256
  .amdhsa_group_segment_fixed_size 0
  .amdhsa_kernarg_size 48
  .amdhsa_user_sgpr_count 2
  .amdhsa_user_sgpr_kernarg_segment_ptr 1
  .amdhsa_system_sgpr_workgroup_id_x 1
.end_amdhsa_kernel
"""
    return src

def sizes(lines):
    tmp = f"_sz{os.getpid()}"
    body = "\n".join(l for l in lines)
    labs = set(re.findall(r"\b(L\w+)\b", body)) - set(re.findall(r"^(L\w+):", body, re.M))
    open(tmp + ".s", "w").write('.amdgcn_target "amdgcn-amd-amdhsa--gfx950"\n.text\n' + body + "\n" + "".join(f"{l}:\n" for l in labs) + "s_endpgm\n")
    subprocess.run(["clang", "-x", "assembler", "-target", "amdgcn-amd-amdhsa", "-mcpu=gfx950", "-c", tmp + ".s", "-o", tmp + ".o"], check=True)
    dis = subprocess.run(["llvm-objdump", "-d", "--mcpu=gfx950", tmp + ".o"], capture_output=True, text=True).stdout
    addr = [int(m.group(1), 16) for m in re.finditer(r"// ([0-9A-F]{12}):", dis)]
    os.remove(tmp + ".s"); os.remove(tmp + ".o")
    out, k = [], 0
    for l in lines:
        if l.strip().endswith(":"): out.append(0)
        else:
            out.append(addr[k + 1] - addr[k]); k += 1
    assert k + 1 == len(addr)
    return out

def check_plan():
    occ = {KSLOT[n]: ("K", n) for n in range(6)}
    for sl in (6, 7, 8): occ[sl] = ("Q0", sl - 3)
    drained, G = {}, 0
    for J in range(2, 20):
        G += cfg.drain.get(J, 0)
        for t in range(G // 4): drained.setdefault(t, J)
    for J in range(2, 20):
        for name in {**cfg.loads0, **cfg.loads1}.get(J, []):
            n = int(name[1:]); sl = KSLOT[n] if name[0] == "K" else 3 + n
            kind, m = occ[sl]
            if kind == "K": assert J >= m and not (name[0] == "K" and n in PRIV), (J, name, occ[sl])
            elif kind == "Q": assert PRIV.get(n) == m and drained[m] <= J, (J, name, occ[sl])
            occ[sl] = (name[0], n)
    for t in range(6):
        kind, m = occ[OSLOT[1][t]]
        assert kind == "Q" or m < 20, (t, kind, m)
def build():
    check_plan()
    kv_dma.clear(); q_dma.clear(); state.update(stq=0, G=0)
    entry, pro = first()
    segs = {J: segment(J) for J in range(2, 20)}
    assert state["G"] == 24 and len(kv_dma) == 24
    segs[20] = tailseg()
    trace = entry + pro + [o for J in range(2, 21) for o in segs[J]]
    resolve_waits(trace)
    if cfg.verbose: print("  vm waits", [(J, [o.vmN for o in segs[J] if o.kind == "wait" and o.vmN is not None]) for J in segs])
    errs = check_trace(trace)
    for e in errs[:20]: print("ERR", e)
    assert not errs
    def txt(ops):
        r = []
        for o in ops:
            t = o.render()
            for x in t.split("\n"): r.append(x.strip() if x.strip().endswith(":") else "    " + x.strip())
        return r
    M = txt(pro)
    ins = 's_memrealtime' if cfg.rt else 's_memtime'
    dst = list(range(42, 60)) + list(range(88, 100))
    for J in range(2, 21):
        if cfg.segstamps:
            M += ["    s_waitcnt lgkmcnt(0)"]
            if J > 2: M.append(f"    s_mov_b32 s{dst[J-3]}, s40")
            M.append(f"    {ins} s[40:41]")
        elif J in (2, 11, 13, 20): M += txt(stamp({2: 5, 11: 6, 13: 7, 20: 8}[J]))
        M += txt(segs[J])
    E = []
    if cfg.segstamps:
        E.append(f"    s_waitcnt lgkmcnt(0)\n    s_mov_b32 s{dst[18]}, s40\n    {ins} s[40:41]\n    s_waitcnt vmcnt(0) lgkmcnt(0)\n    s_mov_b32 s{dst[19]}, s40\n    {ins} s[40:41]\n    s_load_dwordx2 s[68:69], s[0:1], 40\n    s_waitcnt lgkmcnt(0)")
        for i in range(20, 24): E.append(f"    s_mov_b32 s{dst[i]}, s40")
        E.append("    s_lshl_b32 s74, s2, 2\n    s_add_u32 s74, s74, s20\n    s_lshl_b32 s74, s74, 7\n    v_mov_b32 v32, s74\n    v_mov_b32 v0, s62")
        for i in range(24): E.append(f"    v_mov_b32 v{i+1}, s{dst[i]}")
        E.append("    s_mov_b64 exec, 1")
        for i in range(7): E.append(f"    global_store_dwordx4 v32, v[{4*i}:{4*i+3}], s[68:69] offset:{16*i}")
        E.append("    s_endpgm")
    for h in range(2):
        f = FLAG[h]
        E.append(f"    s_cmp_eq_u64 s[{f}:{f+1}], 0\n    s_cbranch_scc1 Lok{h}\n    s_mov_b32 s81, {HEAD*h}\n    s_call_b64 s[30:31], Lslow\nLok{h}:")
    if cfg.echo:
        i, j = cfg.echo
        E.append("    s_waitcnt vmcnt(0)"); E += txt(stamp(9))
        E.append(f"    s_waitcnt lgkmcnt(0)\n    s_sub_u32 s74, s{40+2*j}, s{40+2*i}\nLecho:\n    s_memrealtime s[60:61]\n    s_waitcnt lgkmcnt(0)\n    s_sub_u32 s75, s60, s58\n    s_cmp_lt_u32 s75, s74\n    s_cbranch_scc1 Lecho")
    elif cfg.stamps:
        E.append("    s_waitcnt vmcnt(0)"); E += txt(stamp(9))
        E.append("    s_memrealtime s[60:61]\n    s_waitcnt lgkmcnt(0)")
        E.append("    s_lshl_b32 s74, s2, 2\n    s_add_u32 s74, s74, s20\n    s_lshl_b32 s74, s74, 6\n    v_mov_b32 v16, s74")
        for i in range(10): E.append(f"    v_mov_b32 v{i}, s{40+2*i}")
        E.append("    v_mov_b32 v10, s60\n    v_mov_b32 v11, s62\n    s_mov_b64 exec, 1")
        for i in range(3): E.append(f"    global_store_dwordx4 v16, v[{4*i}:{4*i+3}], s[68:69] offset:{16*i}")
    L_ = txt(entry)
    nh = 0
    if cfg.hops:
        sz = sizes(M)
        M2, pos, nextb, prev = [], 4, 4096, ""
        for l, n in zip(M, sz):
            if pos >= nextb and ("v_mfma" in prev or pos >= nextb + 40) and n:
                M2.append(f"Lhop{nh}:"); M2.append(f"    s_cbranch_execz Lhop{nh+4}"); nh += 1; pos += 4; nextb += 4096
            M2.append(l); pos += n
            if n: prev = l
        M = M2
        L_.append("    s_mov_b64 exec, 0")
        for w in range(3): L_.append(f"    s_cmp_eq_u32 s20, {w}\n    s_cbranch_scc1 Lhop{w}")
        L_.append("    s_branch Lhop3\n.p2align 12\nLmain:\n" + "".join(f"Lhop{nh+i}:\n" for i in range(4)) + "    s_mov_b64 exec, -1")
    else:
        L_.append("    s_branch Lmain\n.p2align 12\nLmain:")
    L_ += M + E
    L_.append("Lend:\n    s_endpgm")
    L_ += txt(slow())
    L_.append("    s_endpgm")
    return wrap(L_)

if __name__ == "__main__":
    out = sys.argv[1]
    for a in sys.argv[2:]:
        k, v = a.split("=", 1)
        assert hasattr(cfg, k), k
        setattr(cfg, k, eval(v) if k not in ("ldflag", "stflag", "st0flag", "stlast") else v.replace("+", " "))
    open(out, "w").write(build())
```

```python
import sys, math, struct, subprocess, re, os
sys.path.insert(0, "gen")
from fw import *

class Cfg:
    ldflag = "nt"; stflag = "sc1"; st0flag = None; stlast = None; stamps = False; rt = False; echo = None; thr_log2 = 32
    verbose = True; force_slow = False; dma_step = 3; init_quads = 3; pf = True; hops = True; segstamps = False
    wmap = None; lazy = {13: 5, 14: 4, 15: 3, 16: 2, 17: 2, 18: 2, 19: 1}; st_space = 4; tail_space = 6; sum4 = True; skip = ()
    loads0 = {4: ["K7"], 5: ["K8", "K9"], 6: ["K10", "K11"], 7: ["Q0", "Q1"], 8: ["Q2", "Q3"], 9: ["K12", "Q4"], 10: ["K13", "Q5"], 11: ["K14"]}
    loads1 = {12: ["K15"], 13: ["K16", "K17"], 14: ["K18", "K19"], 15: ["K20"], 16: ["K21"], 17: ["K22"], 18: ["K23"]}
    drain = {11: 4, 12: 4, 19: 4, 20: 12}
    kslot1 = [1, 2, 0, 3, 4, 1, 2, 0, 3, 4, 1, 2]; priv = {15: 0, 16: 1}; oslot1 = [0, 5, 6, 7, 8, 0]; khint = 1; nobar = (); w_space = 4; drain_lo = {11: 40, 12: 30, 19: 40}; load_at = {}; wbl2 = None; allin = None; wb_all = False; q_space = 2; quiet = 2; kslot0 = [1, 2, 0]; nearly = 7; bar23 = True; issue_at = None; ngroups = 4; kb_lo = {2: 8, 3: 36, 4: 8}; glazy = (); blazy = None; bl_at = (4, 60); lateq_lo = 70; fine = False
cfg = Cfg()

NAME = "standalone__gqa_softmax__near_ridge_kernel"
GS = 1056; QT = 4 * GS; TILE = 8 * GS; PAIR = 2 * TILE; LDS_BYTES = 9 * PAIR
HEAD = 98304
KSLOT = [n % 9 for n in range(12)] + [0, 1, 2, 0, 3, 1, 2, 0, 3, 4, 1, 2]
PRIV = {16: 0, 21: 1}
OSLOT = [[3, 4, 5, 6, 7, 8], [5, 6, 7, 8, 0, 5]]
def O(t, db): return ("v", 32 * t + 4 * db)
def S(p, i=0): return 192 + 8 * (p % 2) + i
def P(p, i=0): return 208 + 4 * (p % 2) + i
def LA(t): return 216 + 4 * t
def NEGM(t): return f"v{240 + t}"
vK, vV, vLin, vQ, vOw, vOr = "v246", "v247", "v248", "v249", "v250", "v251"
TMP = 252
def Q(t, s): return ("a", 16 * t + 4 * s)
def K(par, kb, s): return ("a", 96 + 32 * par + 16 * kb + 4 * s)
def V(par, db): return ("a", 160 + 32 * par + 4 * db)
ONES = ("a", 224); STG = 228
SQ, SKV, SV2, SO = 4, 8, 12, 16
sW, sC, sTHR, sCNT, sKV, sOG, sWQ, sQG, sNC = "s20 s21 s22 s23 s24 s25 s27 s28 s35".split()
FLAG = (76, 78)
NSUB = 144
C_SCALE = (128 ** -0.5) * math.log2(math.e)
def f2u(x): return struct.unpack("<I", struct.pack("<f", x))[0]

ORDER = [divmod(p, 6) for p in range(NSUB)]
ORDER[:24] = [(0, 0), (0, 1), (1, 0), (1, 1), (0, 2), (1, 2), (0, 3), (1, 3)] + [(2, t) for t in range(4)] + [(3, t) for t in range(4)] + \
             [(2, 4), (3, 4), (2, 5), (3, 5), (0, 4), (0, 5), (1, 4), (1, 5)]
GROUPS = [1, 1, 2, 2, 2]
FIRST = {(0, 0), (0, 1), (0, 2), (0, 3), (2, 4), (2, 5)} | {(12, t) for t in range(6)}
ORDER[120:] = [(J, t) for J in (20, 21, 22, 23) for t in (0, 1, 2)] + [(J, t) for J in (20, 21) for t in (3, 4, 5)] + \
              [(22, 3), (23, 3), (22, 4), (23, 4), (22, 5), (23, 5)]
def JT(p): return ORDER[p]

def QKt(p, t, par):
    ops = []
    for kb in range(2):
        for s in range(4):
            D = ("v", S(p, 4 * kb))
            ops.append(mfma16(D, K(par, kb, s), Q(t, s), None if s == 0 else D))
    return ops
def PVt(p, t, par, first):
    la = ("v", LA(t))
    return [mfma16(la, ONES, ("v", P(p)), None if first else la)] + \
           [mfma16(O(t, db), V(par, db), ("v", P(p)), None if first else O(t, db)) for db in range(8)]
def QK(p): J, t = JT(p); return QKt(p, t, J % 2)
def PV(p): J, t = JT(p); return PVt(p, t, J % 2, (J, t) in FIRST)
def colmax(x, a, b):
    return [valu("v_max3_f32", a, x[0], x[1], x[2]), valu("v_max3_f32", a, a, x[3], x[4]), valu("v_max3_f32", a, a, x[5], x[6]),
            valu("v_max_f32", b, a, x[7]), valu("v_max_f32", a, a, x[7]), perm("v_permlane16_swap_b32", a, b),
            valu("v_max_f32", a, a, b), valu("v_mov_b32", b, a), perm("v_permlane32_swap_b32", a, b), valu("v_max_f32", a, a, b)]
def SM(p):
    J, t = JT(p)
    ops = []
    x = [f"v{S(p, i)}" for i in range(8)]
    if (J, t) in FIRST:
        a, b = f"v{TMP + 2 * (p % 2)}", f"v{TMP + 1 + 2 * (p % 2)}"
        ops += eager(colmax(x, a, b) + [valu("v_mul_f32", NEGM(t), sNC, a)])
    for i in range(0, 8, 2):
        for k in (i, i + 1): ops.append(valu("v_fma_f32", x[k], x[k], sC, NEGM(t)))
        for k in (i, i + 1): ops.append(trans("v_exp_f32", x[k], x[k]))
        ops.append(valu("v_cvt_pk_bf16_f32", f"v{P(p, i // 2)}", x[i], x[i + 1]))
    return ops
bias = {}
def window(reg, slot, hint=None):
    ops = []
    if not (0 <= slot - bias[reg] <= 3):
        want = hint if hint is not None else (0 if slot <= 3 else min(slot, 5))
        assert 0 <= slot - want <= 3
        d = (want - bias[reg]) * PAIR
        ops.append(valu("v_add_u32", reg, d, reg) if d > 0 else valu("v_subrev_u32", reg, -d, reg))
        bias[reg] = want
    return eager(ops), (slot - bias[reg]) * PAIR
def khint(n): return cfg.khint if n >= 20 else None
def voff(db): return (db >> 1) * 64 + (db & 1) * 8
def rdK(n, bar="bar"):
    w, b = window(vK, KSLOT[n], khint(n))
    return w, [ds_read("ds_read_b128", *K(n % 2, kb, s), 4, vK, b + kb * 512 + s * 64, extra_rd=[bar]) for kb in range(2) for s in range(4)]
def rdV(n, bar="bar"):
    w, b = window(vV, KSLOT[n], khint(n))
    return w, [ds_read("ds_read_b64_tr_b16", "a", V(n % 2, db)[1] + 2 * kb, 2, vV, b + TILE + kb * 512 + voff(db), extra_rd=[bar]) for db in range(8) for kb in range(2)]
def rdQ(t):
    w, b = window(vQ, 3 + t, 3 if t < 3 else 5)
    r = [ds_read("ds_read_b128", *Q(t, s), 4, vQ, b + s * 64, extra_rd=[f"qok{t}", f"stg{3+t}"]) for s in range(4)]
    for o in r: o.space = ("q", cfg.q_space)
    return w, r
kv_dma, q_dma = {}, {}
def quad(srd, soff, slot, rec, need=("bar",)):
    ops = []
    for i in range(4):
        c = slot * PAIR + 32 * i
        ops.append(salu("s_add_u32", "m0", sWQ, c) if c else salu("s_mov_b32", "m0", sWQ, scc_wr=False))
        d = dma(vLin, srd, soff, 1024 * i, cfg.ldflag, extra_rd=list(need))
        rec.append(d); ops.append(d)
    return ops
def quadKV(n):
    assert n == len(kv_dma)
    need = [f"drained{PRIV[n]}"] if n in PRIV else ["bar"]
    return quad(SKV, sKV, KSLOT[n], kv_dma.setdefault(n, []), need) + [salu("s_add_u32", sKV, sKV, 8192)]
def quadQ(h, t):
    return quad(SQ, sQG, 3 + t, q_dma.setdefault((h, t), [])) + [salu("s_add_u32", sQG, sQG, 4096 if t < 5 else HEAD - 5 * 4096)]
def EPI(t, h, check=True):
    l, r = LA(t), LA(t) + 2
    m = [trans("v_rcp_f32", f"v{r}", f"v{l}"), valu("v_cmp_ngt_f32", "vcc", sTHR, f"v{l}")]
    for i in range(0, 32, 2):
        b = 32 * t + i
        m.append(Op(f"v_pk_mul_f32 v[{b}:{b+1}], v[{b}:{b+1}], v[{r}:{r+1}] op_sel_hi:[1,0]", "valu", vr(b, 2), vr(b, 2)))
    for e in range(4):
        b = O(t, 2 * e)[1]
        for i in range(4): m.append(valu("v_cvt_pk_bf16_f32", f"v{b+i}", f"v{b+2*i}", f"v{b+2*i+1}"))
    ops = [macro(m)]
    if check:
        f = FLAG[h]
        ops.append(Op(f"s_or_b64 s[{f}:{f+1}], s[{f}:{f+1}], vcc", "salu", ["vcc", f"s{f}"], [f"s{f}", "scc"]).w(prio=50))
    sl = OSLOT[h][t]
    w, base = window(vOw, sl, 3 if sl == 3 else None)
    ops += w
    for e in range(4):
        o = ds_write("ds_write_b128", vOw, "v", O(t, 2 * e)[1], 4, base + e * 64,
                     extra_wr=[f"stg{sl}"] if e == 0 else [], extra_rd=[f"stg{sl}"] if e else [])
        o.space = ("w", cfg.w_space)
        o.wr.append(f"ost{t}_{e}"); ops.append(o)
    return eager(ops)
def ost(t): return [f"ost{t}_{e}" for e in range(4)]
def STORE(h, G0, quads, lo=None, space=None, flag=None):
    rds, pre, done = [], [], []
    for i, a in enumerate(quads):
        t, G = divmod(G0 + i, 4)
        sl = OSLOT[h][t]
        w, b = window(vOr, sl, 3 if sl == 3 else None)
        rd = ds_read("ds_read_b128", "a", a, 4, vOr, b + G * GS, extra_rd=ost(t) + [f"stg{sl}"])
        rd.lo = lo
        rds.append(rd); pre += w + [rd]
        if G == 3: done.append(f"drained{t}")
    st = [wait(lds=rds, extra_wr=done)]
    fl = flag if flag is not None else (cfg.st0flag if (h == 0 and cfg.st0flag is not None) else cfg.stflag)
    for i, a in enumerate(quads):
        st.append(bstore("a", a, vLin, SO, sOG, 1024 * i, fl)); st[-1].space = ("st", space or cfg.st_space)
    last = G0 + len(quads) == 24
    st.append(salu("s_add_u32", sOG, sOG, 1024 * len(quads) + (HEAD - 24576 if last else 0)))
    return pre, st
def stamp(i):
    return [raw(f"{'s_memrealtime' if cfg.rt else 's_memtime'} s[{40+2*i}:{41+2*i}]", "salu")] if cfg.stamps else []

FDST = list(range(42, 60)) + list(range(86, 100))
fcnt = [0]
def fstamp():
    if not cfg.fine: return []
    ins = 's_memrealtime' if cfg.rt else 's_memtime'
    o = [raw("s_waitcnt lgkmcnt(0)")]
    if fcnt[0]: o.append(raw(f"s_mov_b32 s{FDST[fcnt[0]-1]}, s40"))
    o.append(raw(f"{ins} s[40:41]")); fcnt[0] += 1
    return o
def nmf(ops): return sum(1 for o in ops if o.kind == "mfma")
def insert_wait(ops, w, after=None):
    rs = set(w.wr)
    k = -1 if after is None else next(i for i, o in enumerate(ops) if o is after)
    for i in range(k + 1, len(ops)):
        if ops[i].kind == "mfma" and rs & set(ops[i].rd):
            w.lo = nmf(ops[:i]) - 3
            ops.insert(i, w); return
    raise AssertionError
def pace(ops, g0, step, lo=None):
    k = 0
    for o in ops:
        if lo is not None: o.lo = lo
        if o.kind == "vmem":
            k += 1; o.hi = g0 + step * k
state = {}
def finish(ops, tail, J, name):
    for o in ops:
        assert "scc" not in o.rd
        if "scc" in o.wr: o.wr.remove("scc")
    lazy = set()
    if cfg.lazy and cfg.lazy.get(J):
        n = cfg.lazy[J]
        for k in range(n):
            s0 = 17 * ((k * 6) // n)
            lazy |= set(range(s0, s0 + 17))
    if J == 3 and cfg.blazy:
        for k in cfg.blazy: lazy |= set(range(17 * k, 17 * k + 17))
    r = schedule(ops, tail=tail, verbose=cfg.verbose, name=name, lazy=lazy)
    waste = (cfg.wmap or {}).get(J, 0) // 8
    if waste:
        out, k = [], 0
        for o in r:
            if o.kind == "mfma":
                k += 1
                if (k * waste) // 102 != ((k - 1) * waste) // 102: out.append(nop(2))
            out.append(o)
        r = out
    return r
def drain_ops(J, lo0, end=96):
    n = cfg.drain.get(J, 0)
    ops = []
    k = 0
    while n:
        c = min(n, 4 if (n <= 4 or n % 4 == 0) else 3)
        if cfg.drain[J] >= 6: c = 2
        qs = [STG + 4 * ((state["stq"] + i) % 6) for i in range(c)]; state["stq"] += c
        pre, st = STORE(0, state["G"], qs, lo=lo0 + (30 if cfg.drain[J] < 6 else (end - lo0) * 2 // cfg.drain[J]) * k)
        state["G"] += c; n -= c; k += 1
        ops += eager(pre + st)
    return ops
def segment(J):
    u0, u1 = 6 * J + 1, 6 * J + 7
    head = [] if J in cfg.nobar else [barrier(rd=["prebar"], wr=["bar"]).w(hi=0)]
    late = []
    st = 2 * cfg.dma_step
    lds = {**cfg.loads0, **cfg.loads1}.get(J, [])
    for k, name in enumerate(lds):
        n = int(name[1:])
        q = quadKV(n) if name[0] == "K" else quadQ(1, n)
        g0 = cfg.load_at.get(name, (92 // len(lds)) * k)
        pace(q, 2 + g0, st, lo=g0 - 2 if g0 else None)
        if late or (name[0] == "K" and n in PRIV): late += q
        else: head += q
    wk, kr = rdK(J + 1); wv, vrd = rdV(J + 1)
    for i, o in enumerate(kr): o.hi = 18 + 5 * i
    for i, o in enumerate(vrd): o.hi = 46 + 3 * i
    head += wk + kr + wv + vrd
    qr = {}
    hook = lambda u: []
    q12 = [t for t in range(6) if f"Q{t}" in cfg.loads0.get(11, [])]
    nepi = min([4] + q12)
    if J == 11:
        lateq = [t for t in range(6) if f"Q{t}" in cfg.loads0.get(10, [])]
        now = [t for t in range(6) if t not in lateq and t not in q12]
        head.append(wait(vm=[d for t in now for d in q_dma[(1, t)]], extra_wr=[f"qok{t}" for t in now]))
        if lateq: head.append(wait(vm=[d for t in lateq for d in q_dma[(1, t)]], extra_wr=[f"qok{t}" for t in lateq]).w(lo=cfg.lateq_lo))
        def hook(u):
            o = []
            t = u - 65
            for t in ([0, 1, 2] if u == 67 else ([t] if 3 <= t <= 5 else [])):
                if t in q12: continue
                w, qr[t] = rdQ(t); o += w + eager(qr[t])
            t = u - 67
            if 0 <= t < nepi: o += EPI(t, 0)
            return o
    if J == 12:
        for t in q12:
            head.append(wait(vm=q_dma[(1, t)], extra_wr=[f"qok{t}"]).w(lo=max(0, 17 * (t - 2) - 22)))
            w, qr[t] = rdQ(t); head += w + eager(qr[t])
        for t in range(nepi, 6): head += EPI(t, 0)
    body = []
    for u in range(u0, u1): body += QK(u + 1) + SM(u) + PV(u - 1) + hook(u)
    if J == 11:
        for t in (0, 1): insert_wait(body, wait(lds=qr[t]), qr[t][-1])
        for t in range(2, 6):
            for o in qr.get(t, []): o.hi = 94
    if J == 12:
        for t in q12: insert_wait(body, wait(lds=qr[t]))
    insert_wait(body, wait(lds=kr))
    nm = nmf(body)
    need = []
    if cfg.allin is not None and J >= cfg.allin:
        if J == cfg.allin: need = kv_dma[23]
    elif J + 1 not in cfg.nobar:
        n = J + 2
        while True:
            need += kv_dma[n]
            if n not in cfg.nobar: break
            n += 1
    w = wait(lds=kr + vrd + [o for t in qr for o in qr[t]], vm=need or None, extra_wr=["prebar"]).w(lo=nm - 1)
    if cfg.wbl2 == J:
        t = "buffer_wbl2 sc1" if cfg.wb_all else "s_cbranch_scc0 Lnowb\n    buffer_wbl2 sc1\nLnowb:"
        late.append(Op("s_cmp_lt_u32 s85, 8\n    " + t, "branch", ["bar"], []).w(lo=4, hi=8))
    ops = head + body + drain_ops(J, cfg.drain_lo.get(J, 10)) + late + [w]
    return finish(ops, [], J, f"seg{J}")

def tailseg():
    ops = [barrier(rd=["prebar"], wr=["bar"]).w(hi=0)]
    lastQK, lastPV, firstuse = {}, {}, {}
    visits = [(21, 123, 119), (22, 126, 122), (23, 129, 125), (20, 132, 128), (21, 135, 131), (22, 138, 134), (23, 139, 137)]
    kafter = {prev: (n, first) for n, first, prev in visits}
    pend = []
    tq = {}
    def reads(kind, n, bar):
        w, r = (rdK if kind == "K" else rdV)(n, bar)
        pend.append(r); return w + r
    ops += reads("K", 21, "bar") + reads("V", 21, "bar")
    ops += drain_ops(20, 4, 150)
    assert state["G"] == 24
    G = 0
    for u in range(121, 145):
        if u + 1 < NSUB:
            ops += QK(u + 1)
            if u + 1 == 122 and cfg.allin is None:
                ops += [wait(vm=kv_dma[22] + ([] if cfg.bar23 else kv_dma[23]), extra_wr=["prebar2"]).w(lo=nmf(ops) + 8), barrier(rd=["prebar2"], wr=["bar2"]).w(hi=nmf(ops) + 9)]
            if u + 1 == 125 and cfg.bar23:
                ops += [wait(vm=kv_dma[23], extra_wr=["prebar3"]).w(lo=nmf(ops) + 8), barrier(rd=["prebar3"], wr=["bar3"]).w(hi=nmf(ops) + 9)]
            if u + 1 in kafter: ops += reads("K", kafter[u + 1][0], "bar3" if (cfg.bar23 and u + 1 >= 125) else "bar2")
        if u < NSUB: ops += SM(u)
        ops += PV(u - 1)
        if u - 1 in kafter and u - 1 > 119: ops += reads("V", kafter[u - 1][0], "bar3" if (cfg.bar23 and u - 1 >= 125) else "bar2")
        Jp, t = JT(u - 1)
        if Jp == 23 and t < 5:
            pre, st = STORE(1, 4 * t, [16 * t + 4 * i for i in range(4)], space=cfg.tail_space if t < 3 else cfg.st_space)
            ops += EPI(t, 1) + eager(pre + st)
    for r in pend: insert_wait(ops, wait(lds=r), r[-1])
    tail = EPI(5, 1)
    pre, st = STORE(1, 20, [80 + 4 * i for i in range(4)], flag=cfg.stlast)
    tail += pre + st[:-1]
    return finish(ops, tail, 20, "tail")

def lane_addrs(B, t):
    B(valu("v_and_b32", t[4], 7, t[2])); B(valu("v_lshrrev_b32", t[5], 3, t[2]))
    B(valu("v_mul_u32_u24", vK, GS, t[4])); B(valu("v_lshl_add_u32", vK, t[5], 8, vK)); B(valu("v_lshl_add_u32", vK, t[3], 4, vK))
    B(valu("v_and_b32", t[4], 1, t[3])); B(valu("v_lshrrev_b32", t[5], 2, t[2])); B(valu("v_lshl_add_u32", t[4], t[4], 2, t[5]))
    B(valu("v_mul_u32_u24", vV, GS, t[4])); B(valu("v_lshrrev_b32", t[4], 1, t[3])); B(valu("v_lshl_add_u32", vV, t[4], 8, vV))
    B(valu("v_lshlrev_b32", vQ, 8, t[5]))
    B(valu("v_and_b32", t[4], 1, t[5])); B(valu("v_xor_b32", t[4], t[4], t[3]))
    B(valu("v_and_b32", t[5], 3, t[2])); B(valu("v_lshl_add_u32", vV, t[5], 4, vV))
    B(salu("s_add_u32", "s84", sWQ, 3 * PAIR))
    B(valu("v_mul_u32_u24", t[5], GS, t[5])); B(valu("v_add3_u32", vQ, vQ, t[5], "s84"))
    B(valu("v_lshl_add_u32", vOw, t[4], 4, vQ))
    B(valu("v_lshl_add_u32", vQ, t[3], 4, vQ))
    B(valu("v_and_b32", t[4], 1, t[3]))
    B(valu("v_lshlrev_b32", t[4], 4, t[4])); B(valu("v_xor_b32", vOr, t[4], vLin)); B(valu("v_add_u32", vOr, "s84", vOr))
    for r in (vQ, vOw, vOr): bias[r] = 3
    for r in (vK, vV): bias[r] = 0

def setup():
    o = []
    A = o.append
    A(raw("s_cmp_ge_u32 s2, 256")); A(raw("s_cbranch_scc1 Lend"))
    o += stamp(0)
    A(raw("s_load_dwordx4 s[36:39], s[0:1], 0")); A(raw("s_load_dwordx4 s[64:67], s[0:1], 16"))
    if cfg.stamps and not cfg.echo: A(raw("s_load_dwordx2 s[68:69], s[0:1], 40"))
    t = [f"v{i}" for i in range(1, 7)]
    A(valu("v_lshrrev_b32", t[0], 6, "v0"))
    A(valu("v_and_b32", t[1], 63, "v0"))
    A(valu("v_readfirstlane_b32", sW, t[0]))
    A(valu("v_lshlrev_b32", vLin, 4, t[1]))
    A(valu("v_and_b32", t[2], 15, t[1]))
    A(valu("v_lshrrev_b32", t[3], 4, t[1]))
    if cfg.pf:
        A(raw("s_getpc_b64 s[70:71]\nLpc:", wr=["s70", "s71"]))
        A(raw("s_add_u32 s70, s70, Lmain-Lpc")); A(raw("s_addc_u32 s71, s71, 0"))
        A(salu("s_lshr_b32", "s72", "s2", 1)); A(salu("s_and_b32", "s72", "s72", 60)); A(salu("s_add_u32", "s72", "s72", sW))
        A(raw("s_min_u32 s72, s72, (Lend-Lmain)>>10"))
        A(salu("s_lshl_b32", "s72", "s72", 10))
        A(valu("v_add_u32", t[4], "s72", vLin))
        A(Op(f"global_load_dwordx4 a[{STG}:{STG+3}], {t[4]}, s[70:71]", "vmem", [t[4]], []))
    A(salu("s_mul_i32", sWQ, sW, QT, scc_wr=False))
    A(salu("s_mul_i32", sQG, sW, 24576, scc_wr=False))
    A(salu("s_and_b32", sKV, sW, 1)); A(salu("s_lshl_b32", sKV, sKV, 12))
    A(salu("s_mul_i32", "s73", "s2", 2 * HEAD, scc_wr=False))
    for srd in (SKV, SQ, SV2, SO):
        A(salu("s_mov_b32", f"s{srd+2}", 2 * HEAD, scc_wr=False)); A(salu("s_mov_b32", f"s{srd+3}", "0x20000", scc_wr=False))
    A(salu("s_mov_b32", sOG, sQG, scc_wr=False))
    A(scmp("s_cmp_lt_u32", sW, 2))
    A(raw("s_waitcnt lgkmcnt(0)"))
    A(raw(f"s_cselect_b64 s[{SKV}:{SKV+1}], s[38:39], s[64:65]"))
    for srd, p in ((SKV, SKV), (SQ, 36), (SO, 66), (SV2, 64)):
        A(salu("s_add_u32", f"s{srd}", f"s{p}", "s73")); A(salu("s_addc_u32", f"s{srd+1}", f"s{p+1}", 0, scc_rd=True))
    late = []
    B = late.append
    lane_addrs(B, t)
    B(salu("s_mov_b32", sC, hex(f2u(C_SCALE)), scc_wr=False)); B(salu("s_mov_b32", sNC, hex(f2u(-C_SCALE)), scc_wr=False))
    B(salu("s_mov_b32", sTHR, hex(f2u(0.0 if cfg.force_slow else 2.0 ** cfg.thr_log2)), scc_wr=False))
    B(salu("s_lshl_b32", "s85", sW, 8)); B(salu("s_add_u32", "s85", "s85", "s2"))
    B(raw(f"s_mov_b64 s[{FLAG[0]}:{FLAG[0]+1}], 0")); B(raw(f"s_mov_b64 s[{FLAG[1]}:{FLAG[1]+1}], 0"))
    B(valu("v_mov_b32", t[0], "0x3f803f80"))
    if cfg.sum4:
        B(valu("v_and_b32", t[4], 3, t[2])); B(valu("v_cmp_eq_u32", "vcc", 0, t[4])); B(valu("v_cndmask_b32", t[0], 0, t[0], "vcc"))
    for i in range(4): B(valu("v_accvgpr_write_b32", f"a{ONES[1]+i}", t[0]))
    return o, late

def hopcall(b):
    if not cfg.hops: return []
    t = "s_mov_b64 exec, 0"
    for w in range(3): t += f"\ns_cmp_eq_u32 s20, {w}\ns_cbranch_scc1 Lhop{4*b+w}"
    t += f"\ns_branch Lhop{4*b+3}"
    if b: t += f"\nLret{b}:\ns_mov_b64 exec, -1"
    return [raw(t, "branch")]
def first():
    seq = ["K0", "Q0", "Q1", "K1", "Q2", "Q3", "K2", "K3", "Q4", "Q5"] + [f"K{n}" for n in range(4, cfg.nearly)]
    loads = list(seq)
    def nxt(n=1):
        o = []
        for _ in range(n):
            x = loads.pop(0); o += quadKV(int(x[1:])) if x[0] == "K" else quadQ(0, int(x[1:]))
        return o
    def arrive(x):
        n = int(x[1:])
        if x[0] == "Q":
            w, q = rdQ(n)
            return [wait(vm=q_dma[(0, n)], extra_wr=[f"qok{n}"])] + w + q + nxt() + [wait(lds=q)], []
        k, v = rdK(n)[1], rdV(n)[1]
        return [wait(vm=kv_dma[n]), barrier()] + k + v + nxt() + [wait(lds=k)], v
    s0, late = setup()
    entry = linear(s0 + nxt(cfg.init_quads) + late + stamp(1))
    o = nxt(4 - cfg.init_quads) + [wait(vm=kv_dma[0]), barrier()] + rdK(0)[1] + rdV(0)[1] + stamp(2) + arrive("Q0")[0]
    out = fstamp() + linear(o) + fstamp()
    p = 0; vpend = []
    for gi, n in enumerate(GROUPS[:cfg.ngroups]):
        g = QK(p)
        for i in range(n + 1):
            if i + 1 < n: g += QK(p + i + 1)
            if i < n: g += SM(p + i)
            if i >= 1: g += PV(p + i - 1)
        if vpend: insert_wait(g, wait(lds=vpend))
        tail, vpend = arrive(seq[gi + 2])
        if gi in (0, 1): tail = hopcall(gi + 1) + tail
        out += schedule(g, tail=tail, verbose=cfg.verbose, name=f"g{gi}")
        if gi == 3: out += stamp(3)
        out += fstamp()
        p += n
    p0 = p
    pend = [vpend] if vpend else []
    g = []
    at = cfg.issue_at or [20 + 64 * i for i in range(9)]
    k = 0
    while loads:
        q = nxt()
        for o in q:
            if "bar" in o.rd: o.rd.remove("bar")
        pace(q, at[k], 6, lo=max(0, at[k] - 4)); k += 1
        g += q
    def reads(f, n, bar):
        w, r = f(n, bar); pend.append(r); return w + r
    def kbar(n, lo):
        return [wait(vm=kv_dma[n], extra_wr=[f"pb{n}"]).w(lo=lo), barrier(rd=[f"pb{n}"], wr=[f"b{n}"]).w(hi=lo + 1)]
    kre = {6: 2, 7: 3, 18: 0, 19: 1, 21: 4}
    tight = {6, 18}
    def afterQK(x):
        o = []
        if x in kre and not (x == 6 and p0 > 6):
            n = kre[x]
            if n in (2, 3, 4): o += kbar(n, nmf(g) + cfg.kb_lo[n])
            r = reads(rdK, n, f"b{n}")
            o += eager(r) if x in tight else r
        if x + 2 in (16, 18):
            t = JT(x + 2)[1]
            w, q = rdQ(t); pend.append(q)
            o += [wait(vm=q_dma[(0, t)], extra_wr=[f"qok{t}"]).w(lo=nmf(g) + 4)] + w + eager(q)
        return o
    v4 = None
    if p0 > 7:
        g += afterQK(7) + reads(rdV, 3, "b3")
    g += QK(p0); g += afterQK(p0)
    def doPV(x):
        nonlocal v4
        o = PV(x)
        if x in kre:
            n = kre[x]
            if n == 4:
                w, v4 = rdV(4, "b4"); o += w + v4
            else:
                r = reads(rdV, n, f"b{n}"); o += eager(r) if x in tight - {6} else r
        return o
    for u in range(p0, 25):
        if u == p0 + 1: g += doPV(p0)
        g += QK(u + 1); g += afterQK(u + 1)
        g += SM(u)
        if u - 1 > p0: g += doPV(u - 1)
    for r in pend: insert_wait(g, wait(lds=r), r[-1] if any(r[-1] is x for x in g) else None)
    g += [wait(lds=v4, vm=kv_dma[5], extra_wr=["prebar"]).w(lo=nmf(g) - 1)]
    out += stamp(4) + finish(g, [], 3, "blend")
    return entry, out

def slow():
    o = []
    A = o.append
    A(label("Lslow"))
    A(raw("s_waitcnt vmcnt(0) lgkmcnt(0)"))
    t = [f"v{i}" for i in range(1, 7)]
    A(valu("v_lshrrev_b32", t[1], 4, vLin)); A(valu("v_and_b32", t[2], 15, t[1])); A(valu("v_lshrrev_b32", t[3], 4, t[1]))
    lane_addrs(A, t)
    A(salu("s_add_u32", "s84", sWQ, 5 * PAIR))
    A(valu("v_bfe_u32", t[4], t[2], 2, 1)); A(valu("v_mul_u32_u24", t[4], PAIR - QT, t[4])); A(valu("v_add3_u32", vK, t[4], vK, "s84"))
    A(valu("v_and_b32", t[4], 1, t[3])); A(valu("v_mul_u32_u24", t[4], PAIR - QT, t[4])); A(valu("v_add3_u32", vV, t[4], vV, "s84"))
    A(salu("s_mul_i32", sOG, sW, 24576, scc_wr=False)); A(salu("s_add_u32", sOG, sOG, "s81"))
    A(salu("s_add_u32", f"s{SKV}", "s38", "s73")); A(salu("s_addc_u32", f"s{SKV+1}", "s39", 0, scc_rd=True))
    def q4(srd, soff, slot):
        o.extend(quad(srd, soff, slot, [])); A(salu("s_add_u32", soff, soff, 4096))
    A(salu("s_mov_b32", "s82", sOG, scc_wr=False))
    for tt in range(6):
        q4(SQ, "s82", 5)
        A(raw("s_waitcnt vmcnt(0)"))
        o.extend([ds_read("ds_read_b128", *Q(tt, s), 4, vQ, 2 * PAIR + s * 64) for s in range(4)])
        A(wait(lgkm0=True))
    for i in range(192): A(valu("v_mov_b32", f"v{i}", 0))
    for i in range(24): A(valu("v_mov_b32", f"v{LA(0)+i}", 0))
    for tt in range(6): A(valu("v_mov_b32", NEGM(tt), "0xff800000"))
    A(salu("s_mov_b32", "s82", "s81", scc_wr=False)); A(salu("s_mov_b32", "s83", "s81", scc_wr=False))
    A(salu("s_mov_b32", sCNT, 12, scc_wr=False))
    A(label("Lslowloop"))
    q4(SKV, "s82", 5); q4(SKV, "s82", 6); q4(SV2, "s83", 7); q4(SV2, "s83", 8)
    A(raw("s_waitcnt vmcnt(0)"))
    o.extend([ds_read("ds_read_b128", *K(0, kb, s), 4, vK, kb * 512 + s * 64) for kb in range(2) for s in range(4)])
    o.extend([ds_read("ds_read_b64_tr_b16", "a", V(0, db)[1] + 2 * kb, 2, vV, 2 * PAIR + kb * 512 + voff(db)) for db in range(8) for kb in range(2)])
    A(wait(lgkm0=True))
    t0, t1 = f"v{TMP}", f"v{TMP+1}"
    for tt in range(6):
        o.extend(QKt(tt, tt, 0))
        x = [f"v{S(tt, i)}" for i in range(8)]
        o.extend(colmax(x, t0, t1))
        A(valu("v_max_f32", t0, t0, NEGM(tt)))
        A(valu("v_sub_f32", t1, NEGM(tt), t0))
        A(valu("v_mul_f32", t1, sC, t1))
        A(trans("v_exp_f32", t1, t1))
        A(valu("v_mov_b32", NEGM(tt), t0))
        A(valu("v_mul_f32", t0, sNC, t0))
        for i in range(8): A(valu("v_fma_f32", x[i], x[i], sC, t0))
        for i in range(8): A(trans("v_exp_f32", x[i], x[i]))
        for i in range(4): A(valu("v_cvt_pk_bf16_f32", f"v{P(tt, i)}", x[2 * i], x[2 * i + 1]))
        for i in range(32): A(valu("v_mul_f32", f"v{32*tt+i}", f"v{32*tt+i}", t1))
        for i in range(4): A(valu("v_mul_f32", f"v{LA(tt)+i}", f"v{LA(tt)+i}", t1))
        o.extend(PVt(tt, tt, 0, False))
    A(nop(12))
    A(salu("s_sub_u32", sCNT, sCNT, 1)); A(scmp("s_cmp_lg_u32", sCNT, 0)); A(raw("s_cbranch_scc1 Lslowloop", "branch"))
    OSLOT.append([5, 6, 7, 8, 5, 6])
    for tt in range(6):
        o.extend(EPI(tt, 2, check=False))
        pre, st = STORE(2, 4 * tt, [STG + 4 * i for i in range(4)])
        o.extend(pre + st)
    OSLOT.pop()
    A(raw("s_waitcnt vmcnt(0) lgkmcnt(0)"))
    A(raw("s_setpc_b64 s[30:31]", "branch"))
    r = linear(o)
    resolve_waits(r)
    errs = check_trace(r)
    assert not errs, errs[:5]
    return r

def wrap(L_):
    hdr = open("standalone__gqa_softmax__near_ridge.s.ref").read().split("; Override launch")[0]
    src = hdr + f"; @launch grid=(256,1,1) block=(256,1,1) lds={LDS_BYTES}\n"
    src += f""".amdgcn_target "amdgcn-amd-amdhsa--gfx950"
.text
.globl {NAME}
.p2align 8
.type {NAME},@function
{NAME}:
"""
    if cfg.stamps or cfg.segstamps or cfg.fine: src += "    s_memrealtime s[62:63]\n"
    src += "\n".join(L_) + "\n"
    src += f""".section .rodata,"a"
.p2align 6
.amdhsa_kernel {NAME}
  .amdhsa_next_free_vgpr 512
  .amdhsa_next_free_sgpr 102
  .amdhsa_accum_offset 256
  .amdhsa_group_segment_fixed_size 0
  .amdhsa_kernarg_size 48
  .amdhsa_user_sgpr_count 2
  .amdhsa_user_sgpr_kernarg_segment_ptr 1
  .amdhsa_system_sgpr_workgroup_id_x 1
.end_amdhsa_kernel
"""
    return src

def sizes(lines):
    tmp = f"_sz{os.getpid()}"
    body = "\n".join(l for l in lines)
    labs = set(re.findall(r"\b(L\w+)\b", body)) - set(re.findall(r"^(L\w+):", body, re.M))
    open(tmp + ".s", "w").write('.amdgcn_target "amdgcn-amd-amdhsa--gfx950"\n.text\n' + body + "\n" + "".join(f"{l}:\n" for l in labs) + "s_endpgm\n")
    subprocess.run(["clang", "-x", "assembler", "-target", "amdgcn-amd-amdhsa", "-mcpu=gfx950", "-c", tmp + ".s", "-o", tmp + ".o"], check=True)
    dis = subprocess.run(["llvm-objdump", "-d", "--mcpu=gfx950", tmp + ".o"], capture_output=True, text=True).stdout
    addr = [int(m.group(1), 16) for m in re.finditer(r"// ([0-9A-F]{12}):", dis)]
    os.remove(tmp + ".s"); os.remove(tmp + ".o")
    out, k = [], 0
    for l in lines:
        if l.strip().endswith(":"): out.append(0)
        else:
            out.append(addr[k + 1] - addr[k]); k += 1
    assert k + 1 == len(addr)
    return out

def check_plan():
    QUIET[0] = cfg.quiet; KSLOT[9:12] = cfg.kslot0
    KSLOT[12:] = cfg.kslot1; PRIV.clear(); PRIV.update(cfg.priv); OSLOT[1] = cfg.oslot1
    occ = {sl: ("Q0", sl - 3) for sl in range(3, 9)}
    occ.update({KSLOT[n]: ("K", max(n, 4)) for n in range(cfg.nearly)})
    drained, G = {}, 0
    for J in range(4, 20):
        G += cfg.drain.get(J, 0)
        for t in range(G // 4): drained.setdefault(t, J)
    lastbar = lambda J: max(j for j in range(4, J + 1) if j not in cfg.nobar)
    for J in range(4, 20):
        for name in {**cfg.loads0, **cfg.loads1}.get(J, []):
            n = int(name[1:]); sl = KSLOT[n] if name[0] == "K" else 3 + n
            kind, m = occ[sl]
            if kind == "K": assert lastbar(J) >= m and not (name[0] == "K" and n in PRIV), (J, name, occ[sl])
            elif kind == "Q": assert PRIV.get(n) == m and drained[m] <= J, (J, name, occ[sl])
            occ[sl] = (name[0], n)
    for t in range(6):
        kind, m = occ[OSLOT[1][t]]
        assert kind == "Q" or m < 20, (t, kind, m)
    assert all(KSLOT[n] < 5 for n in range(20, 24)) and 4 not in cfg.nobar and 20 not in cfg.nobar
def build():
    check_plan()
    kv_dma.clear(); q_dma.clear(); state.update(stq=0, G=0)
    entry, pro = first()
    segs = {J: segment(J) for J in range(4, 20)}
    assert len(kv_dma) == 24
    segs[20] = tailseg()
    trace = entry + pro + [o for J in range(4, 21) for o in segs[J]]
    resolve_waits(trace)
    if cfg.verbose: print("  vm waits", [(J, [o.vmN for o in segs[J] if o.kind == "wait" and o.vmN is not None]) for J in segs])
    errs = check_trace(trace)
    for e in errs[:20]: print("ERR", e)
    assert not errs
    def txt(ops):
        r = []
        for o in ops:
            t = o.render()
            for x in t.split("\n"):
              if not any(re.search(k, x) for k in cfg.skip): r.append(x.strip() if x.strip().endswith(":") else "    " + x.strip())
        return r
    M = txt(pro)
    ins = 's_memrealtime' if cfg.rt else 's_memtime'
    dst = list(range(42, 60)) + list(range(88, 100))
    for J in range(4, 21):
        if cfg.segstamps:
            M += ["    s_waitcnt lgkmcnt(0)"]
            if J == 5: M += [f"    s_mov_b32 s{dst[0]}, s40", f"    s_mov_b32 s{dst[1]}, s40"]
            if J > 4: M.append(f"    s_mov_b32 s{dst[J-3]}, s40")
            M.append(f"    {ins} s[40:41]")
        elif J in (4, 11, 13, 20): M += txt(stamp({4: 5, 11: 6, 13: 7, 20: 8}[J]))
        M += txt(fstamp()) + txt(segs[J])
    E = []
    if cfg.fine:
        E += txt(fstamp()) + ["    s_waitcnt vmcnt(0)"] + txt(fstamp()) + ["    s_load_dwordx2 s[68:69], s[0:1], 40"] + txt(fstamp())
        n = fcnt[0] - 1
        E.append("    s_lshl_b32 s74, s2, 2\n    s_add_u32 s74, s74, s20\n    s_lshl_b32 s74, s74, 7\n    v_mov_b32 v32, s74\n    v_mov_b32 v0, s62")
        for i in range(31): E.append(f"    v_mov_b32 v{i+1}, s{FDST[min(i, n-1)]}")
        E.append("    s_mov_b64 exec, 1")
        for i in range(8): E.append(f"    global_store_dwordx4 v32, v[{4*i}:{4*i+3}], s[68:69] offset:{16*i}")
        E.append("    s_endpgm")
    if cfg.segstamps:
        E.append(f"    s_waitcnt lgkmcnt(0)\n    s_mov_b32 s{dst[18]}, s40\n    {ins} s[40:41]\n    s_waitcnt vmcnt(0) lgkmcnt(0)\n    s_mov_b32 s{dst[19]}, s40\n    {ins} s[40:41]\n    s_load_dwordx2 s[68:69], s[0:1], 40\n    s_waitcnt lgkmcnt(0)")
        for i in range(20, 24): E.append(f"    s_mov_b32 s{dst[i]}, s40")
        E.append("    s_lshl_b32 s74, s2, 2\n    s_add_u32 s74, s74, s20\n    s_lshl_b32 s74, s74, 7\n    v_mov_b32 v32, s74\n    v_mov_b32 v0, s62")
        for i in range(24): E.append(f"    v_mov_b32 v{i+1}, s{dst[i]}")
        E.append("    s_mov_b64 exec, 1")
        for i in range(7): E.append(f"    global_store_dwordx4 v32, v[{4*i}:{4*i+3}], s[68:69] offset:{16*i}")
        E.append("    s_endpgm")
    for h in range(2):
        f = FLAG[h]
        E.append(f"    s_cmp_eq_u64 s[{f}:{f+1}], 0\n    s_cbranch_scc1 Lok{h}\n    s_mov_b32 s81, {HEAD*h}\n    s_call_b64 s[30:31], Lslow\nLok{h}:")
    if cfg.echo:
        i, j = cfg.echo
        E.append("    s_waitcnt vmcnt(0)"); E += txt(stamp(9))
        E.append(f"    s_waitcnt lgkmcnt(0)\n    s_sub_u32 s74, s{40+2*j}, s{40+2*i}\nLecho:\n    s_memrealtime s[60:61]\n    s_waitcnt lgkmcnt(0)\n    s_sub_u32 s75, s60, s58\n    s_cmp_lt_u32 s75, s74\n    s_cbranch_scc1 Lecho")
    elif cfg.stamps:
        E.append("    s_waitcnt vmcnt(0)"); E += txt(stamp(9))
        E.append("    s_memrealtime s[60:61]\n    s_waitcnt lgkmcnt(0)")
        E.append("    s_lshl_b32 s74, s2, 2\n    s_add_u32 s74, s74, s20\n    s_lshl_b32 s74, s74, 6\n    v_mov_b32 v16, s74")
        for i in range(10): E.append(f"    v_mov_b32 v{i}, s{40+2*i}")
        E.append("    v_mov_b32 v10, s60\n    v_mov_b32 v11, s62\n    s_mov_b64 exec, 1")
        for i in range(3): E.append(f"    global_store_dwordx4 v16, v[{4*i}:{4*i+3}], s[68:69] offset:{16*i}")
    L_ = txt(entry)
    nh = 0
    if cfg.hops:
        sz = sizes(M)
        M2, pos, nextb, prev = [], 4, 4096, ""
        for l, n in zip(M, sz):
            if pos >= nextb and ("v_mfma" in prev or pos >= nextb + 40) and n:
                M2.append(f"Lhop{nh}:"); M2.append(f"    s_cbranch_execz Lret{nh//4}"); nh += 1; pos += 4; nextb += 4096
            M2.append(l); pos += n
            if n: prev = l
        assert nh <= 12 and cfg.nearly <= 7
        M = []
        for l in M2:
            m = re.match(r"Lret(\d):", l)
            if m: M += [f"Lhop{k}:" for k in range(nh, 12) if k // 4 == int(m.group(1))]
            M.append(l)
        L_ += txt(hopcall(0))
        L_.append(".p2align 12\nLmain:\nLret0:\n    s_mov_b64 exec, -1")
    else:
        L_.append("    s_branch Lmain\n.p2align 12\nLmain:")
    L_ += M + E
    L_.append("Lend:\n    s_endpgm")
    L_ += txt(slow())
    L_.append("    s_endpgm")
    return wrap(L_)

if __name__ == "__main__":
    out = sys.argv[1]
    for a in sys.argv[2:]:
        k, v = a.split("=", 1)
        assert hasattr(cfg, k), k
        setattr(cfg, k, eval(v) if k not in ("ldflag", "stflag", "st0flag", "stlast") else v.replace("+", " "))
    open(out, "w").write(build())
```
